```python
import torch

def _softmax(x, axis=-1):
    return torch.softmax(x, dim=axis)

def _gelu(x):
    return torch.nn.functional.gelu(x, approximate='tanh')

def _silu(x):
    return torch.nn.functional.silu(x)

def _sigmoid(x):
    return torch.sigmoid(x)

def _layernorm(x, axis=-1, eps=1e-05):
    m = x.mean(dim=axis, keepdim=True)
    v = x.var(dim=axis, keepdim=True, unbiased=False)
    return (x - m) / torch.sqrt(v + eps)

def _scatter_add(tgt, idx, src, axis=0):
    return tgt.clone().index_add_(axis, idx, src)

def _segment_sum(src, seg, n):
    out = torch.zeros((n,) + src.shape[1:], dtype=src.dtype)
    return out.index_add_(0, seg, src)

def _pad(x, pw):
    flat = tuple((v for pair in reversed(pw) for v in pair))
    return torch.nn.functional.pad(x, flat)
kernel_name = 'interleave_layers__spectral_fnet__mixer_gmlp__prompt'

def setup_inputs():

    _w = lambda a: (lambda t: t.to(torch.bfloat16) if t.is_floating_point() else t)(torch.as_tensor(a))

    def _A_setup():
        B, S, D = (1, 2048, 448)
        ns = torch.arange(S)[:, None] * torch.arange(S)[None, :]
        nd = torch.arange(D)[:, None] * torch.arange(D)[None, :]
        Ws_re = torch.cos(-2.0 * torch.pi * ns / S).to(float)
        Ws_im = torch.sin(-2.0 * torch.pi * ns / S).to(float)
        Wd_re = torch.cos(-2.0 * torch.pi * nd / D).to(float)
        Wd_im = torch.sin(-2.0 * torch.pi * nd / D).to(float)
        return {'x': _w((lambda *s: torch.randn(*s, dtype=torch.bfloat16) * 0.05)(B, S, D)), 'dft_seq_re': _w(Ws_re), 'dft_seq_im': _w(Ws_im), 'dft_hid_re': _w(Wd_re), 'dft_hid_im': _w(Wd_im)}
    _A_in = _A_setup()

    def _B_setup():
        B, S, D, F = (1, 2048, 448, 1792)
        Fh = F // 2
        return {'x': _w((lambda *s: torch.randn(*s, dtype=torch.bfloat16) * 0.05)(B, S, D)), 'w_in': _w((lambda *s: torch.randn(*s, dtype=torch.bfloat16) * 1.6)(D, 2 * Fh)), 'w_sp': _w(0.01 * (lambda *s: torch.randn(*s, dtype=torch.bfloat16) * 1.6)(S, S)), 'b_sp': _w(1.0 + 0.01 * (lambda *s: torch.randn(*s, dtype=torch.bfloat16) * 1.6)(S)), 'w_out': _w((lambda *s: torch.randn(*s, dtype=torch.bfloat16) * 1.6)(Fh, D))}
    _B_in = _B_setup()
    return {'A_x': _A_in['x'], 'A_dft_seq_re': _A_in['dft_seq_re'], 'A_dft_seq_im': _A_in['dft_seq_im'], 'A_dft_hid_re': _A_in['dft_hid_re'], 'A_dft_hid_im': _A_in['dft_hid_im'], 'B_x': _B_in['x'], 'B_w_in': _B_in['w_in'], 'B_w_sp': _B_in['w_sp'], 'B_b_sp': _B_in['b_sp'], 'B_w_out': _B_in['w_out']}

def reference(A_x, A_dft_seq_re, A_dft_seq_im, A_dft_hid_re, A_dft_hid_im, B_x, B_w_in, B_w_sp, B_b_sp, B_w_out):

    def _A_ref(x, dft_seq_re, dft_seq_im, dft_hid_re, dft_hid_im):
        a = torch.einsum('bsd,ed->bse', x, dft_hid_re)
        b = torch.einsum('bsd,ed->bse', x, dft_hid_im)
        y = torch.einsum('ts,bse->bte', dft_seq_re, a) - torch.einsum('ts,bse->bte', dft_seq_im, b)
        return y

    def _B_ref(x, w_in, w_sp, b_sp, w_out):
        B, S, D = x.shape
        F = w_in.shape[-1]
        Fh = F // 2
        z = _gelu(torch.einsum('bsd,df->bsf', x, w_in))
        z1 = z[..., :Fh].clone()
        z2 = _layernorm(z[..., Fh:], axis=-1)
        g = torch.einsum('ts,bsf->btf', w_sp, z2) + b_sp[None, :, None]
        return torch.einsum('bsf,fd->bsd', z1 * g, w_out)
    x = A_x
    x = x + _A_ref(_layernorm(x, axis=-1), A_dft_seq_re, A_dft_seq_im, A_dft_hid_re, A_dft_hid_im)
    x = x + _B_ref(_layernorm(x, axis=-1), B_w_in, B_w_sp, B_b_sp, B_w_out)
    x = x + _A_ref(_layernorm(x, axis=-1), A_dft_seq_re, A_dft_seq_im, A_dft_hid_re, A_dft_hid_im)
    x = x + _B_ref(_layernorm(x, axis=-1), B_w_in, B_w_sp, B_b_sp, B_w_out)
    return x
```

```python
import sys
S, D, F, FH = 2048, 448, 1792, 896
ARG = dict(x=0, sre=8, sim=16, hre=24, him=32, bx=40, win=48, wsp=56, bsp=64, wout=72, out=80, dbg=88, ws=96)
SIZE = dict(x=S*D*2, sre=S*S*2, sim=S*S*2, hre=D*D*2, him=D*D*2, win=D*F*2, wsp=S*S*2, bsp=S*2, wout=FH*D*2, out=S*D*2, ws=1 << 28)
MB = 1 << 20
WS = dict(xn=0, a=4*MB, b=8*MB, x1=12*MB, z=16*MB, z2n=32*MB, h=40*MB, x2=48*MB)

def buf(name):
    if name in WS:
        return ('ws', WS[name])
    return (name, 0)

def srd(lines, sreg, name, extra=0):
    base, off = buf(name)
    off += extra
    lines.append(f"s_load_dwordx2 s[{sreg}:{sreg+1}], s[0:1], {ARG[base]}")
    lines.append("s_waitcnt lgkmcnt(0)")
    lines.append(f"s_add_u32 s{sreg}, s{sreg}, {off}")
    lines.append(f"s_addc_u32 s{sreg+1}, s{sreg+1}, 0")
    lines.append(f"s_mov_b32 s{sreg+2}, {SIZE[base]-off}")
    lines.append(f"s_mov_b32 s{sreg+3}, 0x00020000")

kernels = []
def finish(name, lines, grid, block):
    body = "\n".join("    " + l if not l.endswith(":") else l for l in lines)
    kernels.append((name, body, grid, block))

def gemm(name, terms, M, N, dst, ldd, epi=None, res=None, z1=None):
    nb = N // 64
    L = []
    L.append(f"s_cmp_ge_u32 s2, {M*nb}")
    L.append(f"s_cbranch_scc1 {name}_done")
    magic = -(-(1 << 32) // nb)
    L.append(f"s_mul_hi_u32 s40, s2, {magic}")
    L.append(f"s_mul_i32 s41, s40, {nb}")
    L.append("s_sub_u32 s41, s2, s41")
    L.append("s_lshl_b32 s41, s41, 6")
    L.append("v_add_u32 v1, s41, v0")
    L.append("v_mov_b32 v10, 0")
    for ti, (A, lda, B, sbk, sbn, K, sign) in enumerate(terms):
        srd(L, 8, A); srd(L, 12, B)
        L.append(f"s_mul_i32 s42, s40, {lda*2}")
        L.append("v_mov_b32 v2, s42")
        L.append(f"s_mov_b32 s43, {sbn*2}")
        L.append("v_mul_lo_u32 v3, v1, s43")
        L.append("s_mov_b32 s44, 0")
        L.append(f"{name}_k{ti}:")
        for u in range(4):
            L.append(f"buffer_load_ushort v{20+u}, v2, s[8:11], 0 offen offset:{2*u}")
            L.append(f"buffer_load_ushort v{24+u}, v3, s[12:15], 0 offen")
            L.append(f"v_add_u32 v3, {sbk*2}, v3")
        L.append("v_add_u32 v2, 8, v2")
        L.append("s_waitcnt vmcnt(0)")
        for u in range(4):
            L.append(f"v_lshlrev_b32 v{20+u}, 16, v{20+u}")
            L.append(f"v_lshlrev_b32 v{24+u}, 16, v{24+u}")
            L.append(f"v_fma_f32 v10, {'-' if sign < 0 else ''}v{20+u}, v{24+u}, v10")
        L.append("s_add_u32 s44, s44, 4")
        L.append(f"s_cmp_lt_u32 s44, {K}")
        L.append(f"s_cbranch_scc1 {name}_k{ti}")
    if epi == 'res':
        srd(L, 8, res)
        L.append(f"s_mul_i32 s42, s40, {ldd*2}")
        L.append("v_lshl_add_u32 v2, v1, 1, s42")
        L.append("buffer_load_ushort v20, v2, s[8:11], 0 offen")
        L.append("s_waitcnt vmcnt(0)")
        L.append("v_lshlrev_b32 v20, 16, v20")
        L.append("v_add_f32 v10, v10, v20")
    elif epi == 'gelu':
        L.append("v_mul_f32 v20, v10, v10")
        L.append("v_mov_b32 v21, 0x3d372713")
        L.append("v_fma_f32 v20, v20, v21, 1.0")
        L.append("v_mul_f32 v20, v20, v10")
        L.append("v_mul_f32 v20, 0xc0135761, v20")
        L.append("v_exp_f32 v20, v20")
        L.append("s_nop 1")
        L.append("v_add_f32 v20, 1.0, v20")
        L.append("v_rcp_f32 v20, v20")
        L.append("s_nop 1")
        L.append("v_mul_f32 v10, v10, v20")
    elif epi == 'gate':
        srd(L, 8, 'bsp'); srd(L, 12, z1)
        L.append("s_lshl_b32 s42, s40, 1")
        L.append("v_mov_b32 v2, s42")
        L.append("buffer_load_ushort v20, v2, s[8:11], 0 offen")
        L.append(f"s_mul_i32 s42, s40, {F*2}")
        L.append("v_lshl_add_u32 v2, v1, 1, s42")
        L.append("buffer_load_ushort v21, v2, s[12:15], 0 offen")
        L.append("s_waitcnt vmcnt(0)")
        L.append("v_lshlrev_b32 v20, 16, v20")
        L.append("v_lshlrev_b32 v21, 16, v21")
        L.append("v_add_f32 v10, v10, v20")
        L.append("v_mul_f32 v10, v10, v21")
    srd(L, 8, dst)
    L.append(f"s_mul_i32 s42, s40, {ldd*2}")
    L.append("v_lshl_add_u32 v2, v1, 1, s42")
    L.append("v_cvt_pk_bf16_f32 v10, v10, v10")
    L.append("buffer_store_short v10, v2, s[8:11], 0 offen")
    L.append(f"{name}_done:")
    L.append("s_endpgm")
    finish(name, L, M*nb, 64)

def wave_sum(L, v):
    for off in (0x041F, 0x081F, 0x101F, 0x201F, 0x401F):
        L.append(f"ds_swizzle_b32 v9, v{v} offset:{off}")
        L.append("s_waitcnt lgkmcnt(0)")
        L.append(f"v_add_f32 v{v}, v{v}, v9")
    L.append("s_nop 1")
    L.append(f"v_readlane_b32 s46, v{v}, 0")
    L.append(f"v_readlane_b32 s47, v{v}, 32")
    L.append("s_nop 1")
    L.append(f"v_mov_b32 v{v}, s46")
    L.append(f"v_add_f32 v{v}, s47, v{v}")

import struct
def f2u(x): return "0x%08x" % struct.unpack("<I", struct.pack("<f", x))[0]

def ln(name, src, lds_, off, n, dst, ldd):
    L = []
    L.append(f"s_cmp_ge_u32 s2, {S}")
    L.append(f"s_cbranch_scc1 {name}_done")
    srd(L, 8, src, off*2); srd(L, 12, dst)
    L.append(f"s_mul_i32 s42, s2, {lds_*2}")
    L.append("v_lshl_add_u32 v2, v0, 1, s42")
    L.append(f"s_mul_i32 s42, s2, {ldd*2}")
    L.append("v_lshl_add_u32 v3, v0, 1, s42")
    c = n // 64
    for i in range(c):
        L.append(f"buffer_load_ushort v{20+i}, v2, s[8:11], 0 offen offset:{128*i}")
    L.append("s_waitcnt vmcnt(0)")
    L.append("v_mov_b32 v10, 0")
    for i in range(c):
        L.append(f"v_lshlrev_b32 v{20+i}, 16, v{20+i}")
        L.append(f"v_add_f32 v10, v10, v{20+i}")
    wave_sum(L, 10)
    L.append(f"v_mul_f32 v10, {f2u(1.0/n)}, v10")
    L.append("v_mov_b32 v11, 0")
    for i in range(c):
        L.append(f"v_sub_f32 v{20+i}, v{20+i}, v10")
        L.append(f"v_fma_f32 v11, v{20+i}, v{20+i}, v11")
    wave_sum(L, 11)
    L.append(f"v_mul_f32 v11, {f2u(1.0/n)}, v11")
    L.append(f"v_add_f32 v11, {f2u(1e-5)}, v11")
    L.append("v_rsq_f32 v11, v11")
    L.append("s_nop 1")
    for i in range(c):
        L.append(f"v_mul_f32 v{20+i}, v{20+i}, v11")
        L.append(f"v_cvt_pk_bf16_f32 v{20+i}, v{20+i}, v{20+i}")
        L.append(f"buffer_store_short v{20+i}, v3, s[12:15], 0 offen offset:{128*i}")
    L.append(f"{name}_done:")
    L.append("s_endpgm")
    finish(name, L, S, 64)

for l in range(2):
    xin = 'x' if l == 0 else 'x2'
    xout = 'x2' if l == 0 else 'out'
    ln(f"ln1_{l}_kernel", xin, D, 0, D, 'xn', D)
    gemm(f"ga_{l}_kernel", [('xn', D, 'hre', 1, D, D, 1)], S, D, 'a', D)
    gemm(f"gb_{l}_kernel", [('xn', D, 'him', 1, D, D, 1)], S, D, 'b', D)
    gemm(f"gy_{l}_kernel", [('sre', S, 'a', D, 1, S, 1), ('sim', S, 'b', D, 1, S, -1)], S, D, 'x1', D, epi='res', res=xin)
    ln(f"ln2_{l}_kernel", 'x1', D, 0, D, 'xn', D)
    gemm(f"gz_{l}_kernel", [('xn', D, 'win', F, 1, D, 1)], S, F, 'z', F, epi='gelu')
    ln(f"ln3_{l}_kernel", 'z', F, FH, FH, 'z2n', FH)
    gemm(f"gh_{l}_kernel", [('wsp', S, 'z2n', FH, 1, S, 1)], S, FH, 'h', FH, epi='gate', z1='z')
    gemm(f"go_{l}_kernel", [('h', FH, 'wout', D, 1, FH, 1)], S, D, xout, D, epi='res', res='x1')
real = list(kernels)
finish("nop_kernel", ["s_endpgm"], 256, 256)

def emit(fn, nextra):
    o = []
    for (n, b, g, blk) in real:
        o.append(f"; @launch kernel={n} grid=({g},1,1) block=({blk},1,1) lds=0")
    for i in range(nextra):
        o.append("; @launch kernel=nop_kernel grid=(256,1,1) block=(256,1,1) lds=0")
    o.append('.amdgcn_target "amdgcn-amd-amdhsa--gfx950"')
    o.append(".text")
    ks = kernels if nextra else real
    for (n, b, g, blk) in ks:
        o += [f".globl {n}", ".p2align 8", f".type {n},@function", f"{n}:", b]
    o.append('.section .rodata,"a"')
    for (n, b, g, blk) in ks:
        o += [".p2align 6", f".amdhsa_kernel {n}", "  .amdhsa_next_free_vgpr 64", "  .amdhsa_next_free_sgpr 64",
              "  .amdhsa_accum_offset 64", "  .amdhsa_group_segment_fixed_size 0", "  .amdhsa_kernarg_size 104",
              "  .amdhsa_user_sgpr_count 2", "  .amdhsa_user_sgpr_kernarg_segment_ptr 1",
              "  .amdhsa_system_sgpr_workgroup_id_x 1", ".end_amdhsa_kernel"]
    open(fn, "w").write("\n".join(o) + "\n")

emit("naive0.s", 0)
emit("naive500.s", 500)
emit("naive1000.s", 1000)
```

```python
import re

TRANS = ("v_exp_f32", "v_log_f32", "v_rcp_f32", "v_rsq_f32", "v_sqrt_f32", "v_sin_f32", "v_cos_f32")
REG = re.compile(r"^-?\|?([vas])(?:(\d+)|\[(\d+):(\d+)\])\|?$")


def regs(tok):
    tok = tok.strip()
    if tok in ("vcc", "vcc_lo", "vcc_hi"):
        return {("s", "vcc")}
    if tok == "m0":
        return {("s", "m0")}
    if tok in ("exec", "exec_lo", "exec_hi"):
        return {("s", "exec")}
    m = REG.match(tok)
    if not m:
        return set()
    f = m.group(1)
    if m.group(2) is not None:
        return {(f, int(m.group(2)))}
    return {(f, i) for i in range(int(m.group(3)), int(m.group(4)) + 1)}


class I:
    def __init__(self, text):
        self.text = text
        self.label = text.endswith(":") or text.startswith(".") or text.startswith(";")
        self.kind = "other"
        self.w, self.r = set(), set()
        self.a, self.b, self.c = set(), set(), set()
        self.states = 1
        self.op = ""
        if self.label:
            self.states = 0
            return
        body = text.split(";")[0].strip()
        parts = body.split(None, 1)
        self.op = op = parts[0]
        for sfx in ("_e32", "_e64"):
            if self.op.endswith(sfx):
                self.op = op = op[:-4]
        rest = parts[1] if len(parts) > 1 else ""
        ops = [o.strip() for o in rest.split(",")] if rest else []
        if ops:
            last = ops[-1].split()
            mods = last[1:]
            ops[-1] = last[0] if last else ""
        else:
            mods = []
        self.mods = mods
        R = [regs(o) for o in ops]
        allr = lambda xs: set().union(*xs) if xs else set()
        if op == "s_nop":
            self.kind = "nop"
            self.states = int(ops[0], 0) + 1
        elif op.startswith("v_mfma"):
            self.kind = "mfma"
            self.w, self.a, self.b, self.c = R[0], R[1], R[2], R[3]
            self.r = self.a | self.b | self.c
            self.passes = 8 if "32x32" in op else 4
        elif op.startswith("v_"):
            self.kind = "valu"
            self.trans = op in TRANS
            self.dot = op.startswith("v_dot")
            self.perm = op.startswith("v_permlane")
            self.rl = op in ("v_readfirstlane_b32", "v_readlane_b32")
            self.dpp = any(m.startswith(("row_", "quad_perm", "wave_")) for m in mods) or op.endswith("_dpp")
            if self.perm:
                self.w = R[0] | R[1]
                self.r = R[0] | R[1]
            elif op.startswith(("v_add_co", "v_sub_co", "v_addc_co", "v_subb_co")):
                self.w = R[0] | R[1]
                self.r = allr(R[2:])
            else:
                self.w = R[0]
                self.r = allr(R[1:])
                if op.startswith(("v_fmac", "v_dot2c", "v_writelane")) or self.dpp:
                    self.r |= R[0]
            if self.dot:
                self.c = R[0] if op.startswith("v_dot2c") else R[3]
                self.a = R[1] | R[2]
        elif op.startswith("ds_"):
            self.kind = "ds"
            if op.startswith(("ds_read", "ds_bpermute", "ds_swizzle")):
                self.w = R[0]
                self.r = allr(R[1:])
            else:
                self.r = allr(R)
        elif op.startswith(("buffer_", "global_")):
            self.kind = "vmem"
            self.lds = "lds" in mods
            self.wide = op.endswith(("x3", "x4")) and "store" in op
            if "load" in op and not self.lds:
                self.w = R[0]
                self.r = allr(R[1:])
            else:
                self.r = allr(R)
                self.data = R[0] if R else set()
                if "atomic" in op and "sc0" in mods:
                    self.w = R[0]
            if self.lds:
                self.r |= {("s", "m0")}
        elif op.startswith("s_"):
            self.kind = "salu"
            if op.startswith(("s_cmp", "s_cbranch", "s_branch", "s_waitcnt", "s_barrier", "s_sleep", "s_endpgm", "s_setprio", "s_bitcmp")):
                self.r = allr(R)
            elif op.startswith("s_set_gpr_idx_on"):
                self.w = {("s", "m0")}
                self.r = allr(R)
            else:
                self.w = R[0] if R else set()
                self.r = allr(R[1:])


def need(p, c):
    n = 0
    vec = lambda s: {x for x in s if x[0] != "s"}
    sc = lambda s: {x for x in s if x[0] == "s"}
    if p.kind == "valu":
        pw = vec(p.w)
        if c.kind == "mfma" and pw & c.r:
            n = max(n, 3 if p.dot else 2)
        if c.kind == "valu":
            if pw & c.r:
                if c.perm or c.dpp:
                    n = max(n, 2)
                if c.rl:
                    n = max(n, 1)
                if p.trans:
                    n = max(n, 1)
            if p.dot and pw & (c.r | c.w):
                if c.op == p.op and not (pw & c.a):
                    pass
                else:
                    n = max(n, 3)
            if sc(p.w) & c.r:
                n = max(n, 4 if c.op in ("v_readlane_b32", "v_writelane_b32") else 2)
        if c.kind in ("ds", "vmem"):
            if (p.trans or p.dot) and pw & c.r:
                n = max(n, 3 if p.dot else 1)
        if c.kind == "vmem" and sc(p.w) & c.r:
            n = max(n, 5)
        if c.kind == "salu" and sc(p.w) & c.r and p.rl:
            n = max(n, 1)
    elif p.kind == "mfma":
        big = p.passes + 4
        if c.kind == "mfma":
            if p.w & (c.a | c.b):
                n = max(n, big)
            if p.w & c.c and p.w != c.c:
                n = max(n, p.passes + 2)
            if p.w & c.w and not (p.w & c.c):
                n = max(n, p.passes + 2)
        elif c.kind in ("valu", "ds", "vmem"):
            if p.w & (c.r | c.w):
                n = max(n, big)
            if c.kind == "valu" and p.c & c.w:
                n = max(n, p.passes - 1)
    elif p.kind == "salu":
        if ("s", "m0") in p.w and c.kind == "vmem" and c.lds:
            n = max(n, 1)
    elif p.kind == "vmem":
        if p.wide and c.kind in ("valu", "mfma", "ds", "vmem") and p.data & c.w:
            n = max(n, 2)
    return n


def pad(lines):
    out = []
    hist = []
    added = 0
    for t in lines:
        c = I(t)
        if not c.label and c.kind != "nop":
            dist = 0
            req = 0
            for p in reversed(hist):
                if dist >= 14:
                    break
                req = max(req, need(p, c) - dist)
                dist += p.states
            if req > 0:
                nop = I(f"s_nop {req - 1}")
                out.append(nop.text)
                hist.append(nop)
                added += req
        out.append(t)
        if not c.label:
            hist.append(c)
            hist = hist[-20:]
    return out, added
```

```python
import struct

S, D, F, FH = 2048, 448, 1792, 896
ARG = dict(x=0, sre=8, sim=16, hre=24, him=32, bx=40, win=48, wsp=56, bsp=64, wout=72, out=80, dbg=88, ws=96)
SIZE = dict(x=S*D*2, sre=S*S*2, sim=S*S*2, hre=D*D*2, him=D*D*2, bx=S*D*2, win=D*F*2, wsp=S*S*2, bsp=S*2,
            wout=FH*D*2, out=S*D*2, dbg=256, ws=1 << 28)
MAIN = "interleave_layers__spectral_fnet__mixer_gmlp__prompt_kernel"


def f2u(x):
    return "0x%08x" % struct.unpack("<I", struct.pack("<f", x))[0]


def vr(base, n=1):
    return f"v{base}" if n == 1 else f"v[{base}:{base+n-1}]"


def ar(base, n=1):
    return f"a{base}" if n == 1 else f"a[{base}:{base+n-1}]"


def sr(base, n=1):
    return f"s{base}" if n == 1 else f"s[{base}:{base+n-1}]"


class Kern:
    def __init__(self, name, grid, block, lds, vgpr=256, agpr=0, sgpr=102):
        self.name, self.grid, self.block, self.lds = name, grid, block, lds
        self.vgpr, self.agpr, self.sgpr = vgpr, agpr, sgpr
        self.L = []
        self.nlab = 0

    def __call__(self, text):
        for line in text.strip("\n").split("\n"):
            line = line.strip()
            if line:
                self.L.append(line)

    def label(self, stem):
        self.nlab += 1
        return f"{self.name}_{stem}_{self.nlab}"

    def body(self):
        return "\n".join(l if l.endswith(":") else "    " + l for l in self.L)


def emit(kernels, launches=None, header=""):
    o = []
    if header:
        o.append(header.rstrip("\n"))
    if launches is None:
        k = kernels[0]
        o.append(f"; @launch grid=({k.grid},1,1) block=({k.block},1,1) lds={k.lds}")
    else:
        for k in launches:
            o.append(f"; @launch kernel={k.name} grid=({k.grid},1,1) block=({k.block},1,1) lds={k.lds}")
    o.append('.amdgcn_target "amdgcn-amd-amdhsa--gfx950"')
    o.append(".text")
    for k in kernels:
        o += [f".globl {k.name}", ".p2align 8", f".type {k.name},@function", f"{k.name}:", k.body()]
    o.append('.section .rodata,"a"')
    for k in kernels:
        acc = (k.vgpr + 3) // 4 * 4
        nfv = acc + k.agpr if k.agpr else k.vgpr
        o += [".p2align 6", f".amdhsa_kernel {k.name}", f"  .amdhsa_next_free_vgpr {nfv}",
              f"  .amdhsa_next_free_sgpr {k.sgpr}", f"  .amdhsa_accum_offset {acc}",
              "  .amdhsa_group_segment_fixed_size 0", "  .amdhsa_kernarg_size 104",
              "  .amdhsa_user_sgpr_count 2", "  .amdhsa_user_sgpr_kernarg_segment_ptr 1",
              "  .amdhsa_system_sgpr_workgroup_id_x 1", ".end_amdhsa_kernel"]
    return "\n".join(o) + "\n"
```

```python
import sys
from lib import *
import hazard

CNT = 0x0
FL = 0x4000
ST = 0x10000
PB = 0x100000
PSTR = 0x100000
ZB = 0x400000
ZSTR = 0x400000
HB = 0xC00000
HSTR = 0x400000
X2 = 0x1400000
TS = 0x2000000
XR = 0
WR = 57344
CR = 114688
RED = 114688
SCR = 139264
LDS = 163840
SX, SWS, SWD, SWIN, SWSP, SWO, SXD, SMISC = 4, 8, 12, 16, 20, 24, 28, 32
sOUT = 56
sW, sCB, sJ, sL, sA, sXCD, sTOK, sA1 = 62, 63, 64, 65, 66, 67, 68, 69
sTS, sTI = 70, 72
sHI, sPL, sPH = 73, 74, 75
sT = 76
sG0, sG1 = 96, 97
sSPIN = 98
vL, vR, vQ, vTS, vBIAS = 0, 1, 2, 3, 4
vT = 8
ACC0 = 24
ACC = 28
COEF = 140
RING = 156
WADR = 188
XN = 196
MF = "v_mfma_f32_16x16x32_bf16"
SPIN_MAX = 1 << 20


class Gen(Kern):
    def __init__(self, dbg=False, stop=None):
        super().__init__(MAIN, 256, 256, LDS, vgpr=256, agpr=256, sgpr=102)
        self.dbg, self.stop = dbg, stop
        self.names = []

    def srd(self, s, base, size):
        self(f"s_mov_b32 s{s}, s{base}\ns_mov_b32 s{s+1}, s{base+1}\ns_mov_b32 s{s+2}, {size}\ns_mov_b32 s{s+3}, 0x00020000")

    def stamp(self, name):
        if not self.dbg:
            return
        self.names.append(name)
        self(f"""
        s_memrealtime s[{sTS}:{sTS+1}]
        s_waitcnt lgkmcnt(0)
        s_mov_b32 m0, s{sTI}
        v_writelane_b32 v{vTS}, s{sTS}, m0
        s_add_u32 s{sTI}, s{sTI}, 1
        """)

    def halt(self, name):
        if self.stop == name:
            self("s_branch finish")

    def qsum(self, v, t):
        self(f"""
        v_mov_b32 v{t}, v{v}
        v_permlane16_swap_b32 v{v}, v{t}
        v_add_f32 v{v}, v{v}, v{t}
        v_mov_b32 v{t}, v{v}
        v_permlane32_swap_b32 v{v}, v{t}
        v_add_f32 v{v}, v{v}, v{t}
        """)

    def qsum2(self, a, b, t):
        for op in ("v_permlane16_swap_b32", "v_permlane32_swap_b32"):
            self(f"""
            v_mov_b32 v{t}, v{a}
            v_mov_b32 v{t+1}, v{b}
            {op} v{a}, v{t}
            {op} v{b}, v{t+1}
            v_add_f32 v{a}, v{a}, v{t}
            v_add_f32 v{b}, v{b}, v{t+1}
            """)

    def meanrstd(self, a, b, n):
        self(f"""
        v_mul_f32 v{a}, {f2u(1.0/n)}, v{a}
        v_mul_f32 v{b}, {f2u(1.0/n)}, v{b}
        v_fma_f32 v{b}, -v{a}, v{a}, v{b}
        v_max_f32 v{b}, 0, v{b}
        v_add_f32 v{b}, {f2u(1e-5)}, v{b}
        v_rsq_f32 v{b}, v{b}
        """)

    def poll(self, vaddr, vdat, starget):
        lab = self.label("poll")
        self(f"""
        s_mov_b32 s{sSPIN}, 0
        {lab}:
        buffer_load_dword v{vdat}, v{vaddr}, s[{SWS}:{SWS+3}], 0 offen sc1
        s_add_u32 s{sSPIN}, s{sSPIN}, 1
        s_cmp_gt_u32 s{sSPIN}, {SPIN_MAX}
        s_cbranch_scc1 {lab}_x
        s_waitcnt vmcnt(0)
        v_cmp_gt_u32 vcc, s{starget}, v{vdat}
        s_cbranch_vccnz {lab}
        {lab}_x:
        """)

    def prologue(self):
        k = self
        k(f"""
        s_cmp_ge_u32 s2, 256
        s_cbranch_scc1 done
        s_load_dwordx16 s[36:51], s[0:1], 0
        s_load_dwordx8 s[52:59], s[0:1], 64
        s_load_dwordx2 s[60:61], s[0:1], 96
        s_getpc_b64 s[{SMISC}:{SMISC+1}]
        codebase:
        s_mov_b32 s{SMISC+2}, codeend-codebase
        s_mov_b32 s{SMISC+3}, 0x00020000
        s_lshr_b32 s{sT}, s2, 3
        v_lshrrev_b32 v{vT}, 6, v0
        v_and_b32 v{vL}, 63, v0
        v_readfirstlane_b32 s{sW}, v{vT}
        v_and_b32 v{vR}, 15, v{vL}
        v_lshrrev_b32 v{vQ}, 4, v{vL}
        s_lshl_b32 s{sT+1}, s{sT}, 11
        v_lshl_add_u32 v{vT}, v{vR}, 7, s{sT+1}
        s_mov_b64 exec, 0xffff
        buffer_load_dword v255, v{vT}, s[{SMISC}:{SMISC+3}], 0 offen
        s_mov_b64 exec, -1
        s_mov_b32 s{sTI}, 0
        v_mov_b32 v{vTS}, 0
        s_and_b32 s{sXCD}, s2, 7
        s_and_b32 s{sCB}, s{sT}, 7
        s_lshr_b32 s{sT+1}, s{sT}, 4
        s_lshl_b32 s{sT+2}, s{sXCD}, 1
        s_add_u32 s{sT+1}, s{sT+1}, s{sT+2}
        s_sub_u32 s{sT+2}, 32, s{sT+1}
        s_cmp_eq_u32 s{sT+1}, 0
        s_cselect_b32 s{sT+2}, 16, s{sT+2}
        s_bitcmp1_b32 s{sT}, 3
        s_cselect_b32 s{sJ}, s{sT+2}, s{sT+1}
        s_sub_u32 s{sA1}, 64, s{sJ}
        s_cmp_eq_u32 s{sJ}, 0
        s_cselect_b32 s{sA1}, 32, s{sA1}
        s_cmp_ge_u32 s{sW}, 2
        s_cselect_b32 s{sA}, s{sA1}, s{sJ}
        s_and_b32 s{sT+1}, s{sW}, 1
        s_lshl_b32 s{sT+1}, s{sT+1}, 10
        s_add_u32 s{sTOK}, s{sA}, s{sT+1}
        s_mov_b32 s{sL}, 0
        s_mov_b32 s{sHI}, 0xffff0000
        s_mov_b32 s{sPL}, 0x05040100
        s_mov_b32 s{sPH}, 0x07060302
        s_mov_b32 s{sG0}, {f2u(-2.302208198)}
        s_mov_b32 s{sG1}, {f2u(-2.302208198*0.044715)}
        s_waitcnt lgkmcnt(0)
        """)
        k.srd(SX, 36, SIZE['x'])
        k(f"""
        s_cmp_ge_u32 s{sW}, 2
        s_cselect_b32 s{SWD}, s44, s42
        s_cselect_b32 s{SWD+1}, s45, s43
        s_mov_b32 s{SWD+2}, {SIZE['hre']}
        s_mov_b32 s{SWD+3}, 0x00020000
        """)
        k.srd(SWS, 60, SIZE['ws'])
        k.stamp("start")

    def prologue2(self):
        k = self
        k.srd(SWIN, 48, SIZE['win'])
        k.srd(SWSP, 50, SIZE['wsp'])
        k.srd(SWO, 54, SIZE['wout'])
        k(f"""
        s_add_u32 s{SXD}, s60, {X2}
        s_addc_u32 s{SXD+1}, s61, 0
        s_mov_b32 s{SXD+2}, {SIZE['x']}
        s_mov_b32 s{SXD+3}, 0x00020000
        """)
        k.srd(SMISC, 52, SIZE['bsp'])
        t = vT
        k(f"""
        v_lshl_add_u32 v{t}, v{vR}, 6, s{sTOK}
        v_lshlrev_b32 v{t}, 1, v{t}
        buffer_load_ushort v{vBIAS}, v{t}, s[{SMISC}:{SMISC+3}], 0 offen
        s_lshl_b32 s{sT}, s{sJ}, 2
        s_add_u32 s{sT}, s{sT}, s{sW}
        s_lshl_b32 s{sT+1}, s{sT}, 10
        s_lshl_b32 s{sT+2}, s{sCB}, 7
        s_add_u32 s{sT+1}, s{sT+1}, s{sT+2}
        s_add_u32 s{sT+1}, s{sT+1}, {ST}
        v_and_b32 v{t+1}, 31, v{vL}
        v_lshrrev_b32 v{t+2}, 5, v{vL}
        v_lshlrev_b32 v{t+2}, 17, v{t+2}
        v_lshl_add_u32 v{t+1}, v{t+1}, 2, v{t+2}
        v_mov_b32 v{t+2}, -1
        buffer_store_dword v{t+2}, v{t+1}, s[{SWS}:{SWS+3}], s{sT+1} offen sc1
        s_lshl_b32 s{sT+1}, s{sT}, 7
        s_lshl_b32 s{sT+2}, s{sCB}, 2
        s_add_u32 s{sT+1}, s{sT+1}, s{sT+2}
        s_add_u32 s{sT+1}, s{sT+1}, {FL}
        v_mov_b32 v{t+3}, 0
        s_mov_b64 exec, 1
        buffer_store_dword v{t+3}, v{t+3}, s[{SWS}:{SWS+3}], s{sT+1} offen sc1
        s_mov_b64 exec, -1
        """)
        k.srd(SMISC, 58, SIZE['dbg'])

    def cnt_init(self):
        k = self
        t = vT
        k(f"""
        s_lshl_b32 s{sT}, s{sW}, 8
        s_or_b32 s{sT}, s2, s{sT}
        s_cmp_lg_u32 s{sT}, 56
        s_cbranch_scc1 noinit
        v_lshlrev_b32 v{t}, 7, v{vL}
        v_mov_b32 v{t+1}, 0
        buffer_store_dword v{t+1}, v{t}, s[{SWS}:{SWS+3}], 0 offen sc1
        """)
        k.srd(SMISC, 58, SIZE['dbg'])
        k(f"""
        v_mov_b32 v{t+2}, 1
        s_waitcnt vmcnt(0)
        s_mov_b64 exec, 1
        buffer_store_dword v{t+2}, v{t+1}, s[{SMISC}:{SMISC+3}], 0 offen sc1
        s_mov_b64 exec, -1
        noinit:
        """)

    def rows_dma(self, srd, va, dest, flags):
        k = self
        k(f"s_mul_i32 s{sT}, s{sW}, 14336\ns_add_u32 m0, s{sT}, {dest}")
        for kp in range(7):
            for rh in range(2):
                k(f"buffer_load_dwordx4 v{va+rh}, s[{srd}:{srd+3}], 0 offen offset:{128*kp} {flags} lds")
                if (kp, rh) != (6, 1):
                    k(f"s_add_u32 m0, m0, {1024 if rh == 0 else 1024-128}")

    def dma_chunk(self, v):
        self(f"""
        v_xor_b32 v{v}, v{vL}, v{vQ}
        v_and_b32 v{v}, 7, v{v}
        v_lshlrev_b32 v{v}, 4, v{v}
        v_xor_b32 v{v+1}, 64, v{v}
        """)

    def x_dma(self):
        k = self
        t = vT
        k.dma_chunk(t)
        k(f"""
        v_lshrrev_b32 v{t+2}, 3, v{vL}
        v_lshl_add_u32 v{t+2}, v{t+2}, 6, s{sTOK}
        v_mul_u32_u24 v{t+2}, 896, v{t+2}
        v_add_u32 v{t}, v{t}, v{t+2}
        v_add_u32 v{t+1}, v{t+1}, v{t+2}
        v_add_u32 v{t+1}, {512*896}, v{t+1}
        """)
        k.rows_dma(SX, t, XR, "sc1")

    def wd_dma(self):
        k = self
        t = vT + 4
        lab = k.label("nowd")
        k(f"s_cmp_eq_u32 s{sCB}, 7\ns_cbranch_scc1 {lab}")
        k.dma_chunk(t)
        k(f"""
        s_and_b32 s{sT}, s{sW}, 1
        s_lshl_b32 s{sT}, s{sT}, 3
        s_lshl_b32 s{sT+1}, s{sCB}, 5
        s_add_u32 s{sT}, s{sT}, s{sT+1}
        s_add_u32 s{sT}, s{sT}, 1
        v_lshrrev_b32 v{t+2}, 5, v{vL}
        v_bfe_u32 v{t+3}, v{vL}, 3, 2
        v_lshl_add_u32 v{t+2}, v{t+2}, 4, v{t+3}
        v_add_u32 v{t+2}, s{sT}, v{t+2}
        v_mul_u32_u24 v{t+2}, 896, v{t+2}
        v_add_u32 v{t}, v{t}, v{t+2}
        v_add_u32 v{t+1}, v{t+1}, v{t+2}
        v_add_u32 v{t+1}, {4*896}, v{t+1}
        """)
        k.rows_dma(SWD, t, WR, "")
        k(f"{lab}:")

    M2 = 100

    def m2_gen(self):
        k = self
        t = vT
        step, b0, b1, m0_, m1_, c0, c1 = t, t+1, t+2, t+3, t+4, t+5, t+6
        a0, a1, rp = t+7, t+8, t+9
        k(f"""
        s_lshl_b32 s{sT}, s{sW}, 3
        v_lshrrev_b32 v{c0}, 1, v{vR}
        v_add_u32 v{c0}, s{sT}, v{c0}
        v_cvt_f32_u32 v{c0}, v{c0}
        v_mul_f32 v{step}, {f2u(1/32)}, v{c0}
        v_and_b32 v{rp}, 1, v{vR}
        v_cvt_f32_u32 v{c1}, v{vQ}
        v_mul_f32 v{c1}, {f2u(8.0)}, v{c1}
        v_mul_f32 v{b0}, v{c1}, v{step}
        s_cmp_eq_u32 s{sJ}, 0
        s_cselect_b32 s{sT+1}, 0.5, 1.0
        s_cselect_b32 s{sT+2}, 0, {f2u(0.25)}
        s_cselect_b32 s{sT+3}, 0, {f2u(0.75)}
        s_cselect_b32 s{sT+4}, 0, -1
        v_fma_f32 v{b1}, s{sT+1}, v{step}, v{b0}
        v_cvt_f32_u32 v{c0}, v{rp}
        v_fma_f32 v{b0}, s{sT+2}, v{c0}, v{b0}
        v_fma_f32 v{b1}, s{sT+3}, v{c0}, v{b1}
        v_add_u32 v{m0_}, -1, v{rp}
        v_sub_u32 v{m1_}, 0, v{rp}
        v_or_b32 v{m0_}, s{sT+4}, v{m0_}
        v_or_b32 v{m1_}, s{sT+4}, v{m1_}
        """)
        for h, (b, m) in enumerate(((b0, m0_), (b1, m1_))):
            for e in range(4):
                k(f"v_add_f32 v{a1}, v{b}, v{step}")
                for ri, op in enumerate(("v_cos_f32", "v_sin_f32")):
                    d = self.M2 + 4 * (2 * ri + h) + e
                    k(f"""
                    {op} v{c0}, v{b}
                    {op} v{c1}, v{a1}
                    v_cvt_pk_bf16_f32 v{d}, v{c0}, v{c1}
                    v_and_b32 v{d}, v{d}, v{m}
                    """)
                if e < 3:
                    k(f"v_add_f32 v{b}, v{a1}, v{step}")

    def phase_a1(self):
        k = self
        t = vT
        xa, wa, s1, s2, one = t, t+2, t+4, t+5, t+6
        A1, RG, CF, A2 = 24, 40, 116, 148
        k(f"""
        s_waitcnt vmcnt(0)
        s_barrier
        """)
        k.stamp("a1_data")
        k(f"""
        s_cmp_eq_u32 s{sCB}, 7
        s_cbranch_scc1 a1_skip
        v_lshrrev_b32 v{wa}, 1, v{vR}
        v_xor_b32 v{wa}, v{wa}, v{vQ}
        v_lshlrev_b32 v{wa}, 4, v{wa}
        v_lshl_add_u32 v{wa}, v{vR}, 7, v{wa}
        s_mul_i32 s{sT}, s{sW}, 14336
        v_add_u32 v{xa}, s{sT}, v{wa}
        v_xor_b32 v{xa+1}, 64, v{xa}
        v_add_u32 v{wa}, {WR}, v{wa}
        v_xor_b32 v{wa+1}, 64, v{wa}
        v_mov_b32 v{one}, 0x3f803f80
        v_mov_b32 v{s1}, 0
        v_mov_b32 v{s2}, 0
        """)

        def reads(ks):
            b = RG + 20 * (ks % 3)
            o = (ks // 2) * 2048
            L = [f"ds_read_b128 {vr(b, 4)}, v{xa + ks % 2} offset:{o}"]
            for T in range(4):
                L.append(f"ds_read_b128 {vr(b + 4 + 4*T, 4)}, v{wa + ks % 2} offset:{o + T*14336}")
            return L
        for l in reads(0) + reads(1):
            k(l)
        for ks in range(14):
            b = RG + 20 * (ks % 3)
            k(f"s_waitcnt lgkmcnt({5 if ks < 13 else 0})")
            rd = reads(ks + 2) if ks + 2 < 14 else []
            for T in range(4):
                c = vr(A1 + 4*T, 4) if ks else "0"
                k(f"{MF} {vr(A1 + 4*T, 4)}, {vr(b + 4 + 4*T, 4)}, {vr(b, 4)}, {c}")
                if rd:
                    k(rd.pop(0))
                    if T == 3:
                        k(rd.pop(0))
                k(f"v_dot2_f32_bf16 v{s1}, v{b+T}, v{one}, v{s1}")
                k(f"v_dot2_f32_bf16 v{s2}, v{b+T}, v{b+T}, v{s2}")
        k.qsum2(s1, s2, t + 7)
        k.meanrstd(s1, s2, D)
        ca = t
        k(f"""
        v_bfe_u32 v{ca}, v{vR}, 1, 2
        v_lshrrev_b32 v{ca+1}, 3, v{vR}
        v_lshlrev_b32 v{ca+1}, 1, v{ca+1}
        v_xor_b32 v{ca}, v{ca}, v{ca+1}
        v_xor_b32 v{ca}, v{ca}, v{vQ}
        v_lshlrev_b32 v{ca}, 4, v{ca}
        v_lshl_add_u32 v{ca}, v{vR}, 6, v{ca}
        s_lshl_b32 s{sT}, s{sW}, 10
        s_add_u32 s{sT}, s{sT}, {CR}
        v_add_u32 v{ca}, s{sT}, v{ca}
        """)
        for ri in range(2):
            for i in range(8):
                k(f"v_mul_f32 v{A1+8*ri+i}, v{A1+8*ri+i}, v{s2}")
            for i in range(4):
                k(f"v_cvt_pk_bf16_f32 v{RG+4*ri+i}, v{A1+8*ri+2*i}, v{A1+8*ri+2*i+1}")
            k(f"ds_write_b128 v{ca}, {vr(RG+4*ri, 4)} offset:{4096*ri}")
        rb, pa = t + 1, t + 3
        k(f"""
        v_bfe_u32 v{t+4}, v{vL}, 1, 1
        v_bfe_u32 v{t+5}, v{vL}, 3, 1
        v_xor_b32 v{t+4}, v{t+4}, v{t+5}
        v_and_b32 v{t+5}, 1, v{vQ}
        v_lshl_add_u32 v{t+4}, v{t+5}, 1, v{t+4}
        v_and_b32 v{t+5}, 1, v{vL}
        v_lshl_add_u32 v{t+4}, v{t+4}, 1, v{t+5}
        v_lshlrev_b32 v{t+4}, 3, v{t+4}
        v_bfe_u32 v{t+5}, v{vL}, 2, 2
        v_lshl_add_u32 v{t+5}, v{vQ}, 3, v{t+5}
        v_lshl_add_u32 v{rb}, v{t+5}, 6, v{t+4}
        v_add_u32 v{rb}, {CR}, v{rb}
        v_xor_b32 v{rb+1}, 32, v{rb}
        s_waitcnt lgkmcnt(0)
        s_barrier
        """)
        for ks in range(4):
            for T2 in range(2):
                for hi in range(2):
                    k(f"ds_read_b64_tr_b16 {vr(CF + 8*ks + 4*T2 + 2*hi, 2)}, v{rb + (T2 ^ hi)} offset:{2048*ks + 256*hi}")
            if ks == 2:
                k("s_waitcnt lgkmcnt(8)")
                for T2 in range(2):
                    k(f"{MF} {vr(A2+4*T2, 4)}, {vr(CF + 4*T2, 4)}, {vr(self.M2, 4)}, 0")
        k(f"""
        s_lshr_b32 s{sT}, s{sJ}, 1
        s_and_b32 s{sT}, s{sT}, 2
        v_xor_b32 v{pa}, s{sT}, v{vQ}
        v_and_b32 v{t+4}, 1, v{vR}
        v_lshl_add_u32 v{pa}, v{t+4}, 2, v{pa}
        v_lshlrev_b32 v{pa}, 4, v{pa}
        v_lshrrev_b32 v{t+4}, 1, v{vR}
        v_mul_u32_u24 v{t+4}, 28672, v{t+4}
        v_add_u32 v{pa}, v{pa}, v{t+4}
        s_mul_i32 s{sT}, s{sW}, {8*28672}
        s_lshl_b32 s{sT+1}, s{sCB}, 12
        s_add_u32 s{sT}, s{sT}, s{sT+1}
        s_lshl_b32 s{sT+1}, s{sJ}, 7
        s_add_u32 s{sT}, s{sT}, s{sT+1}
        s_mul_i32 s{sT+1}, s{sL}, {PSTR}
        s_add_u32 s{sT}, s{sT}, s{sT+1}
        s_add_u32 s{sT}, s{sT}, {PB}
        """)
        for ks in range(1, 4):
            k(f"s_waitcnt lgkmcnt({4*(3-ks)})")
            for T2 in range(2):
                k(f"{MF} {vr(A2+4*T2, 4)}, {vr(CF + 8*ks + 4*T2, 4)}, {vr(self.M2 + 4*ks, 4)}, {vr(A2+4*T2, 4)}")
        for i in range(4):
            k(f"v_cvt_pk_bf16_f32 v{RING+i}, v{A2+2*i}, v{A2+2*i+1}")
        k(f"""
        buffer_store_dwordx4 {vr(RING, 4)}, v{pa}, s[{SWS}:{SWS+3}], s{sT} offen sc1
        s_branch a1_join
        a1_skip:
        s_barrier
        a1_join:
        """)
        k.stamp("a1_pstore")

    def acc_init(self):
        k = self
        t = vT
        bd, bn, bm, rb, sw, tmp = t, t+4, t+8, t+12, t+13, t+14
        k(f"""
        s_mul_i32 s{sT}, s{sW}, 14336
        v_lshlrev_b32 v{rb}, 7, v{vR}
        v_add_u32 v{rb}, s{sT}, v{rb}
        v_lshrrev_b32 v{sw}, 1, v{vR}
        v_lshlrev_b32 v{sw}, 4, v{sw}
        """)
        for m in range(4):
            k(f"""
            v_lshl_add_u32 v{tmp}, v{vQ}, 3, {32*m if m < 3 else 64}
            """ + (f"v_add_u32 v{tmp}, 32, v{tmp}\n" if m == 3 else "") + f"""
            v_xor_b32 v{bd+m}, v{tmp}, v{sw}
            v_add_u32 v{bd+m}, v{bd+m}, v{rb}
            v_xor_b32 v{bm+m}, 24, v{bd+m}
            v_add_u32 v{tmp}, 8, v{tmp}
            v_lshrrev_b32 v{tmp+1}, 7, v{tmp}
            v_and_b32 v{tmp}, 127, v{tmp}
            v_xor_b32 v{tmp}, v{tmp}, v{sw}
            v_lshl_add_u32 v{tmp}, v{tmp+1}, 11, v{tmp}
            v_add_u32 v{bn+m}, v{tmp}, v{rb}
            """)
        k(f"""
        v_add_u32 v{tmp}, v{rb}, v{sw}
        v_mov_b32 v{ACC0+3}, 0
        """)
        for n in range(14):
            k(f"v_mov_b32 v{ACC+4*n+3}, 0")
        k(f"ds_read_u16_d16_hi v{ACC0+3}, v{tmp}")
        for g in range(4):
            ns = range(7*g, 7*g + 7)
            for n in ns:
                R = ACC + 4*n
                o = (n // 4) * 2048
                if n < 14:
                    k(f"ds_read_b64 {vr(R, 2)}, v{bd + n % 4} offset:{o}")
                    k(f"ds_read_u16_d16_hi v{R+3}, v{bn + n % 4} offset:{o}")
                else:
                    k(f"ds_read_b64 {vr(R+2, 2)}, v{bm + n % 4} offset:{o}")
            k("s_waitcnt lgkmcnt(0)")
            for n in ns:
                R = ACC + 4*n
                if n < 14:
                    k(f"""
                    v_and_b32 v{R+2}, s{sHI}, v{R+1}
                    v_lshlrev_b32 v{R+1}, 16, v{R+1}
                    v_and_b32 v{R}, s{sHI}, v{R}
                    """)
                else:
                    k(f"""
                    v_and_b32 v{R}, s{sHI}, v{R+3}
                    v_lshlrev_b32 v{R+1}, 16, v{R+3}
                    v_lshlrev_b32 v{R+3}, 16, v{R+2}
                    v_and_b32 v{R+2}, s{sHI}, v{R+2}
                    """)

    def coef_gen(self):
        k = self
        t = vT
        tok, st, a, c0, c1 = t, t+1, t+2, t+3, t+4
        k(f"""
        v_lshl_add_u32 v{tok}, v{vR}, 6, s{sTOK}
        v_cvt_f32_u32 v{st}, v{tok}
        v_mul_f32 v{st}, {f2u(1/2048)}, v{st}
        v_cvt_f32_u32 v{a}, v{vQ}
        v_mul_f32 v{a}, 4.0, v{a}
        v_mul_f32 v{a}, v{a}, v{st}
        """)
        for ks in range(2):
            for e in range(4):
                d = COEF + 4*ks + e
                k(f"""
                v_cos_f32 v{c0}, v{a}
                v_sin_f32 v{c1}, v{a}
                v_cvt_pk_bf16_f32 v{d}, v{c0}, v{c1}
                v_xor_b32 v{d+8}, 0x80000000, v{d}
                """)
                if e < 3:
                    k(f"v_add_f32 v{a}, v{a}, v{st}")
                elif ks == 0:
                    k(f"s_mov_b32 s{sT}, {f2u(13.0)}\nv_fma_f32 v{a}, s{sT}, v{st}, v{a}")
        k(f"""
        v_lshlrev_b32 v{c0}, 26, v{tok}
        v_sub_u32 v{c1}, 0, v{tok}
        v_lshlrev_b32 v{c1}, 26, v{c1}
        v_and_b32 v{c0}, 0x80000000, v{c0}
        v_and_b32 v{c1}, 0x80000000, v{c1}
        s_mov_b64 exec, 0xffff
        v_or_b32 v{COEF}, 0x3f803f80, v{c0}
        v_or_b32 v{COEF+8}, 0x3f803f80, v{c1}
        s_mov_b64 exec, -1
        """)

    def arrive(self, first_check):
        k = self
        t = vT
        lab = k.label("arr")
        k(f"""
        s_waitcnt vmcnt(0)
        s_barrier
        s_cmp_lg_u32 s{sW}, 0
        s_cbranch_scc1 {lab}
        """)
        if first_check:
            k(f"""
            s_cmp_lg_u32 s{sL}, 0
            s_cbranch_scc1 {lab}_r
            v_mov_b32 v{t}, 0
            s_mov_b32 s{sSPIN}, 0
            {lab}_p:
            buffer_load_dword v{t+1}, v{t}, s[{SMISC}:{SMISC+3}], 0 offen sc1
            s_add_u32 s{sSPIN}, s{sSPIN}, 1
            s_cmp_gt_u32 s{sSPIN}, {SPIN_MAX}
            s_cbranch_scc1 {lab}_r
            s_waitcnt vmcnt(0)
            v_cmp_eq_u32 vcc, 0, v{t+1}
            s_cbranch_vccnz {lab}_p
            {lab}_r:
            """)
        k(f"""
        s_lshl_b32 s{sT}, s{sCB}, 7
        v_lshl_add_u32 v{t}, v{vL}, 10, s{sT}
        v_mov_b32 v{t+1}, 1
        s_mov_b64 exec, 0xff
        buffer_atomic_add v{t+1}, v{t}, s[{SWS}:{SWS+3}], 0 offen sc1
        s_mov_b64 exec, -1
        {lab}:
        """)

    def wait_cnt(self, glob):
        k = self
        t = vT
        lab = k.label("wc")
        k(f"""
        s_cmp_lg_u32 s{sW}, 0
        s_cbranch_scc1 {lab}
        s_lshl_b32 s{sT}, s{sXCD}, 10
        s_lshl_b32 s{sT+1}, s{sL}, 6
        s_add_u32 s{sT+1}, s{sT+1}, {32 if glob else 64}
        """)
        if glob:
            k(f"v_and_b32 v{t}, 7, v{vL}\nv_lshl_add_u32 v{t}, v{t}, 7, s{sT}")
        else:
            k(f"s_lshl_b32 s{sT+2}, s{sCB}, 7\ns_add_u32 s{sT}, s{sT}, s{sT+2}\nv_mov_b32 v{t}, s{sT}")
        k("s_mov_b64 exec, 0xff" if glob else "s_mov_b64 exec, 1")
        k.poll(t, t + 1, sT + 1)
        k(f"""
        s_mov_b64 exec, -1
        {lab}:
        s_barrier
        """)

    def a_load(self):
        k = self
        t = vT
        ra, src, tmp = t, t+4, t+5
        FR, TP = 196, 228
        k(f"""
        s_cmp_lg_u32 s{sL}, 0
        s_cbranch_scc1 a_done
        s_lshl_b32 s{sT+2}, s{sW}, 15
        v_xor_b32 v{tmp}, v{vQ}, v{vR}
        v_lshlrev_b32 v{tmp}, 4, v{tmp}
        v_lshl_add_u32 v{tmp}, v{vR}, 10, v{tmp}
        v_add_u32 v{ra}, s{sT+2}, v{tmp}
        v_xor_b32 v{ra+1}, 64, v{ra}
        v_xor_b32 v{ra+2}, 0x80, v{ra}
        v_xor_b32 v{ra+3}, 0xc0, v{ra}
        v_lshlrev_b32 v{src}, 4, v{vL}
        """)

        def dma(m):
            k(f"""
            s_add_u32 s{sT}, s{sW}, {m}
            s_bitcmp1_b32 s{sT}, 1
            s_cselect_b32 s{sT+1}, s{sA1}, s{sJ}
            s_and_b32 s{sT}, s{sT}, 1
            s_lshl_b32 s{sT}, s{sT}, 10
            s_add_u32 s{sT}, s{sT}, s{sT+1}
            s_lshl_b32 s{sT}, s{sT}, 12
            s_lshl_b32 s{sT+1}, s{sW}, 10
            s_add_u32 s{sT}, s{sT}, s{sT+1}
            s_add_u32 m0, s{sT+2}, {(m % 2) * 16384}
            """)
            for r in range(16):
                k(f"v_xor_b32 v{tmp}, {16*r}, v{src}")
                k(f"buffer_load_dwordx4 v{tmp}, s[{SWSP}:{SWSP+3}], s{sT} offen lds")
                if r < 15:
                    k(f"s_add_u32 m0, m0, 1024\ns_add_u32 s{sT}, s{sT}, {64*4096}")
        dma(0)
        dma(1)
        for m in range(4):
            k(f"s_waitcnt vmcnt({16 if m < 3 else 0})")
            for cp in range(2):
                for i in range(8):
                    n = 2*i + cp
                    k(f"ds_read_b128 {vr(FR + 4*i, 4)}, v{ra + n % 4} offset:{(m % 2)*16384 + (n // 4)*256}")
                k("s_waitcnt lgkmcnt(0)")
                if cp == 1 and m + 2 < 4:
                    dma(m + 2)
                for x in range(8):
                    for y in range(4):
                        lo, hi = FR + 4*(2*y) + x // 2, FR + 4*(2*y + 1) + x // 2
                        k(f"v_perm_b32 v{TP + y}, v{hi}, v{lo}, s{sPH if x % 2 else sPL}")
                    for y in range(4):
                        k(f"v_accvgpr_write_b32 a{64*m + 4*(8*cp + x) + y}, v{TP + y}")
        k("s_barrier\na_done:")

    def win_addr(self):
        k = self
        t = vT
        VD, V3, VM = WADR, WADR + 2, WADR + 4
        k(f"s_mul_i32 s{sT}, s{sW}, 57344")
        for hf in range(2):
            row, ch = t, t + 1
            if hf == 0:
                k(f"""
                v_lshrrev_b32 v{row}, 2, v{vL}
                v_and_b32 v{ch}, 1, v{vQ}
                v_lshlrev_b32 v{ch}, 1, v{ch}
                v_xor_b32 v{ch}, v{ch}, v{vL}
                v_and_b32 v{ch}, 3, v{ch}
                """)
            else:
                k(f"""
                v_bfe_u32 v{row}, v{vL}, 1, 4
                v_and_b32 v{ch}, 1, v{vL}
                """)
            k(f"""
            v_lshlrev_b32 v{ch}, 4, v{ch}
            v_add_u32 v{t+2}, 1, v{row}
            v_mul_u32_u24 v{t+2}, 3584, v{t+2}
            v_add3_u32 v{VD+hf}, v{t+2}, v{ch}, s{sT}
            v_sub_u32 v{t+2}, 15, v{row}
            v_mul_u32_u24 v{t+2}, 3584, v{t+2}
            v_add3_u32 v{VM+hf}, v{t+2}, v{ch}, s{sT}
            s_cmp_ge_u32 s{sW}, 2
            s_cselect_b64 vcc, -1, 0
            v_cndmask_b32 v{V3+hf}, v{VD+hf}, v{VM+hf}, vcc
            v_add_u32 v{V3+hf}, {12*57344}, v{V3+hf}
            v_sub_u32 v{t+2}, v{V3+hf}, v{ch}
            v_cmp_eq_u32 vcc, {224*3584}, v{t+2}
            s_cmp_eq_u32 s{sW}, 2
            s_cselect_b64 vcc, vcc, 0
            v_cndmask_b32 v{V3+hf}, v{V3+hf}, v{ch}, vcc
            """)
        k(f"""
        s_mul_i32 s{sT+10}, s{sCB}, 224
        s_and_b32 s{sT}, s{sCB}, 1
        s_mul_i32 s{sT+1}, s{sT}, 192
        s_sub_u32 s{sT+11}, s{sT+10}, s{sT+1}
        s_add_u32 s{sT+11}, s{sT+11}, 192
        s_lshl_b32 s{sT}, s{sT}, 5
        s_add_u32 s{sT+10}, s{sT+10}, s{sT}
        s_mul_i32 s{sT+12}, s{sW}, 3584
        """)

    def win_dma(self, part, i):
        va = WADR + (0 if i < 3 else 2 if i == 3 else 4)
        off = (0 if i == 3 else 4 * i * 57344) + 1792 * part
        dst = (WR if part else XR) + 4 * i * 3584
        G = []
        for u in range(3):
            pre = f"s_add_u32 s{sT+13}, s{sT+10}, {off}\n" if u == 0 else ""
            G.append(pre + f"s_add_u32 m0, s{sT+12}, {dst + u*960}\n"
                     f"buffer_load_dwordx4 v{va}, s[{SWIN}:{SWIN+3}], s{sT+13} offen offset:{64*u} lds")
        G.append(f"s_add_u32 m0, s{sT+12}, {dst + 3072}\ns_add_u32 s{sT+13}, s{sT+11}, {off}\ns_mov_b32 exec_hi, 0\n"
                 f"buffer_load_dwordx4 v{va+1}, s[{SWIN}:{SWIN+3}], s{sT+13} offen lds\ns_mov_b32 exec_hi, -1")
        return G

    def phase_s1(self):
        k = self
        t = vT
        src, pb = t, t + 2
        s1, s2 = t + 6, t + 8
        k(f"""
        s_lshl_b32 s{sT+2}, s{sW}, 10
        v_lshl_add_u32 v{src}, v{vL}, 4, s{sT+2}
        s_mul_i32 s{sT+3}, s{sL}, {PSTR}
        s_add_u32 s{sT+3}, s{sT+3}, {PB}
        s_mul_i32 s{sT}, s{sJ}, 28672
        s_add_u32 s{sT}, s{sT}, s{sT+3}
        s_and_b32 s{sT+1}, s{sA1}, 31
        s_mul_i32 s{sT+1}, s{sT+1}, 28672
        s_add_u32 s{sT+1}, s{sT+1}, s{sT+3}
        """)
        for cbT in range(7):
            for s in range(2):
                k(f"s_add_u32 m0, s{sT+2}, {XR + s*28672 + cbT*4096}")
                k(f"buffer_load_dwordx4 v{src}, s[{SWS}:{SWS+3}], s{sT+s} offen sc1 lds")
                if cbT < 6:
                    k(f"s_add_u32 s{sT+s}, s{sT+s}, 4096")
        k(f"""
        v_and_b32 v{t+10}, 3, v{vL}
        v_and_b32 v{t+11}, 1, v{vQ}
        v_lshl_add_u32 v{t+10}, v{t+11}, 2, v{t+10}
        v_lshlrev_b32 v{t+10}, 3, v{t+10}
        v_bfe_u32 v{t+11}, v{vL}, 2, 2
        v_lshl_add_u32 v{t+11}, v{vQ}, 3, v{t+11}
        v_lshl_add_u32 v{t+10}, v{t+11}, 6, v{t+10}
        s_cmp_ge_u32 s{sW}, 2
        s_cselect_b32 s{sT}, 28672, 0
        s_cselect_b32 s{sT+1}, 0, 28672
        v_add_u32 v{pb}, s{sT}, v{t+10}
        v_xor_b32 v{pb+1}, 32, v{pb}
        v_add_u32 v{pb+2}, s{sT+1}, v{t+10}
        v_xor_b32 v{pb+3}, 32, v{pb+2}
        v_mov_b32 v{s1}, 0
        v_mov_b32 v{s1+1}, 0
        v_mov_b32 v{s2}, 0
        v_mov_b32 v{s2+1}, 0
        """)
        order = [(cbT, mir, half) for cbT in range(7) for mir in range(2) for half in range(2)]
        chunk_at = {0: 8, 12: 0}

        def reads(i):
            cbT, mir, half = order[i]
            b = RING + 8 * (i % 4)
            return [f"ds_read_b64_tr_b16 {vr(b + 4*ks + 2*hi, 2)}, v{pb + 2*mir + half} offset:{cbT*4096 + ks*2048 + hi*256}"
                    for ks in range(2) for hi in range(2)]

        def tile(i):
            cbT, mir, half = order[i]
            T = 2*cbT + half
            return ACC + 4 * (27 - T if mir else T)

        def stats(i):
            R = tile(i)
            L = []
            if R == ACC + 4*14:
                L.append(f"s_mov_b32 exec_lo, 0\ns_mov_b32 exec_hi, 0xffff0000\nv_mov_b32 v{R+3}, v{ACC0+3}\ns_mov_b64 exec, -1")
            for p in range(2):
                L.append(f"v_pk_add_f32 {vr(s1, 2)}, {vr(s1, 2)}, {vr(R+2*p, 2)}")
                L.append(f"v_pk_fma_f32 {vr(s2, 2)}, {vr(R+2*p, 2)}, {vr(R+2*p, 2)}, {vr(s2, 2)}")
            return L
        issued = 0

        def issue(n):
            nonlocal issued
            if n in chunk_at:
                k(f"s_waitcnt vmcnt({chunk_at[n]})\ns_barrier")
                if n == 0:
                    k.stamp("s1_data")
            issued = n + 1
            return reads(n)
        for n in range(3):
            for l in issue(n):
                k(l)
        for i in range(28):
            k(f"s_waitcnt lgkmcnt({4 * (issued - i - 1)})")
            rd = issue(i + 3) if i + 3 < 28 else []
            b = RING + 8 * (i % 4)
            mir = order[i][1]
            R = tile(i)
            st = stats(i - 2) if i >= 2 else []
            for ks in range(2):
                k(f"{MF} {vr(R, 4)}, {vr(b + 4*ks, 4)}, {vr(COEF + 8*mir + 4*ks, 4)}, {vr(R, 4)}")
                for l in rd[2*ks:2*ks+2]:
                    k(l)
                h = (len(st) + 1) // 2
                for l in (st[:h] if ks == 0 else st[h:]):
                    k(l)
        k("s_barrier")
        for l in stats(26) + stats(27):
            k(l)
        k(f"v_add_f32 v{s1}, v{s1}, v{s1+1}\nv_add_f32 v{s2}, v{s2}, v{s2+1}")
        k.qsum2(s1, s2, t)
        k.meanrstd(s1, s2, D)
        k(f"""
        s_min_u32 s{sT}, s{sCB}, 6
        s_lshl_b32 s{sT}, s{sT}, 4
        s_set_gpr_idx_on s{sT}, gpr_idx(SRC0)
        """)
        for i in range(20):
            k(f"v_mov_b32 v{RING+i}, v{ACC0+i}")
        k(f"""
        s_set_gpr_idx_off
        v_mul_f32 v{s1}, -v{s1}, v{s2}
        v_mov_b32 v{s2+1}, v{s2}
        v_mov_b32 v{s1+1}, v{s1}
        """)
        for i in range(56):
            k(f"v_pk_fma_f32 {vr(ACC+2*i, 2)}, {vr(ACC+2*i, 2)}, {vr(s2, 2)}, {vr(s1, 2)}")
            if i:
                k(f"v_cvt_pk_bf16_f32 v{XN+i-1}, v{ACC+2*i-2}, v{ACC+2*i-1}")
        k(f"v_cvt_pk_bf16_f32 v{XN+55}, v{ACC+110}, v{ACC+111}")
        k.stamp("s1_done")

    Z2, Z1, WRING = 24, 52, 80

    def zgemm(self, part, extra, sync):
        k = self
        t = vT
        e = t
        acc = self.Z2 if part else self.Z1
        base = WR if part else XR
        k(f"""
        v_and_b32 v{t+6}, 3, v{vL}
        v_lshlrev_b32 v{t+6}, 3, v{t+6}
        v_lshrrev_b32 v{t+7}, 2, v{vL}
        v_lshl_add_u32 v{e+2}, v{t+7}, 5, v{t+6}
        v_add_u32 v{e+2}, {base + 3072}, v{e+2}
        v_lshl_add_u32 v{e}, v{t+7}, 6, v{t+6}
        v_and_b32 v{t+6}, 1, v{vQ}
        v_lshl_add_u32 v{e}, v{t+6}, 5, v{e}
        v_add_u32 v{e}, {base}, v{e}
        v_xor_b32 v{e+1}, 32, v{e}
        v_add_u32 v{e+3}, {14*3584}, v{e}
        v_add_u32 v{e+4}, {14*3584}, v{e+1}
        v_add_u32 v{e+5}, {14*3584}, v{e+2}
        """)

        def read(ks, nt):
            b = self.WRING + 28 * (ks % 2) + 4 * nt
            L = []
            for hi in range(2):
                n = 2*ks + hi
                v = e + (nt % 2 if nt < 6 else 2) + 3 * (n // 14)
                o = (n % 14) * 3584 + ((nt // 2) * 1024 if nt < 6 else 0)
                L.append(f"ds_read_b64_tr_b16 {vr(b + 2*hi, 2)}, v{v} offset:{o}")
            return "\n".join(L)
        extra = list(extra)
        if 0 in sync:
            k(sync[0])
        for nt in range(7):
            k(read(0, nt))
        for ks in range(14):
            if ks + 1 in sync:
                k(sync[ks + 1])
            for nt in range(7):
                if nt == 0:
                    k("s_waitcnt lgkmcnt(6)")
                if nt == 4:
                    k(f"s_waitcnt lgkmcnt({8 if ks < 13 else 0})")
                b = self.WRING + 28 * (ks % 2) + 4 * nt
                c = vr(acc + 4*nt, 4) if ks else "0"
                k(f"{MF} {vr(acc + 4*nt, 4)}, {vr(b, 4)}, {vr(XN + 4*ks, 4)}, {c}")
                if ks < 13:
                    k(read(ks + 1, nt))
                if extra and (nt == 3 or (nt == 6 and len(extra) > 13 - ks)):
                    k(extra.pop(0))
        assert not extra

    def gelu(self, base, n, extra=()):
        k = self
        T = 136
        extra = list(extra)
        for g in range(0, n, 4):
            r = [base + g + i for i in range(4)]
            for i in range(4):
                k(f"v_mul_f32 v{T+i}, v{r[i]}, v{r[i]}")
            for i in range(4):
                k(f"v_fma_f32 v{T+i}, v{T+i}, v{T+4}, s{sG0}")
            for i in range(4):
                k(f"v_mul_f32 v{T+i}, v{T+i}, v{r[i]}")
            for i in range(4):
                k(f"v_exp_f32 v{T+i}, v{T+i}")
            if extra:
                k(extra.pop(0))
            for i in range(4):
                k(f"v_add_f32 v{T+i}, 1.0, v{T+i}")
            for i in range(4):
                k(f"v_rcp_f32 v{T+i}, v{T+i}")
            if extra:
                k(extra.pop(0))
            for i in range(4):
                k(f"v_mul_f32 v{r[i]}, v{r[i]}, v{T+i}")
        for x in extra:
            k(x)

    def phase_z(self):
        k = self
        t = vT
        Z2, Z1 = self.Z2, self.Z1
        b1 = [g for i in range(4) for g in k.win_dma(0, i)]
        b2 = [g for i in range(4, 7) for g in k.win_dma(0, i)]
        k.zgemm(1, b1, {})
        k(f"s_barrier\nv_mov_b32 v140, s{sG1}")
        k.stamp("z2_gemm")
        k.gelu(Z2, 28, b2)
        s1, s2 = t + 8, t + 10
        k(f"v_pk_add_f32 {vr(s1, 2)}, {vr(Z2, 2)}, {vr(Z2+2, 2)}")
        k(f"v_pk_mul_f32 {vr(s2, 2)}, {vr(Z2, 2)}, {vr(Z2, 2)}")
        for i in range(1, 14):
            if i > 1:
                k(f"v_pk_add_f32 {vr(s1, 2)}, {vr(s1, 2)}, {vr(Z2+2*i, 2)}")
            k(f"v_pk_fma_f32 {vr(s2, 2)}, {vr(Z2+2*i, 2)}, {vr(Z2+2*i, 2)}, {vr(s2, 2)}")
        k(f"v_add_f32 v{s1}, v{s1}, v{s1+1}\nv_add_f32 v{s1+1}, v{s2}, v{s2+1}")
        k.qsum2(s1, s1 + 1, s2)
        sa = t + 12
        k(f"""
        s_lshl_b32 s{sT+4}, s{sL}, 5
        s_add_u32 s{sT+4}, s{sT+4}, s{sJ}
        s_lshl_b32 s{sT+4}, s{sT+4}, 2
        s_add_u32 s{sT+4}, s{sT+4}, s{sW}
        s_lshl_b32 s{sT+4}, s{sT+4}, 10
        s_add_u32 s{sT+4}, s{sT+4}, {ST}
        s_lshl_b32 s{sT}, s{sCB}, 7
        s_add_u32 s{sT}, s{sT}, s{sT+4}
        v_lshlrev_b32 v{sa}, 3, v{vR}
        v_and_b32 v{s1}, -2, v{s1}
        v_and_b32 v{s1+1}, -2, v{s1+1}
        s_mov_b64 exec, 0xffff
        buffer_store_dwordx2 {vr(s1, 2)}, v{sa}, s[{SWS}:{SWS+3}], s{sT} offen sc1
        s_mov_b64 exec, -1
        v_lshl_add_u32 v{sa}, v{vQ}, 8, v{sa}
        """)
        k.stamp("z2_pub")
        k.zgemm(0, [], {0: "s_waitcnt vmcnt(13)\ns_barrier", 8: "s_waitcnt vmcnt(1)\ns_barrier"})
        k.stamp("z1_gemm")
        lab = k.label("st")
        k(f"""
        s_mov_b32 s{sSPIN}, 0
        {lab}:
        buffer_load_dwordx2 {vr(s1, 2)}, v{sa}, s[{SWS}:{SWS+3}], s{sT+4} offen sc1
        buffer_load_dwordx2 {vr(s2, 2)}, v{sa}, s[{SWS}:{SWS+3}], s{sT+4} offen offset:128 sc1
        s_add_u32 s{sSPIN}, s{sSPIN}, 1
        s_cmp_gt_u32 s{sSPIN}, {SPIN_MAX}
        s_cbranch_scc1 {lab}_x
        s_waitcnt vmcnt(0)
        v_max_u32 v{t}, v{s1}, v{s1+1}
        v_max3_u32 v{t}, v{t}, v{s2}, v{s2+1}
        v_cmp_eq_u32 vcc, -1, v{t}
        s_cbranch_vccnz {lab}
        {lab}_x:
        s_waitcnt vmcnt(0)
        v_add_f32 v{s1}, v{s1}, v{s2}
        v_add_f32 v{s2}, v{s1+1}, v{s2+1}
        """)
        k.stamp("z_stats")
        k.qsum2(s1, s2, t)
        k.meanrstd(s1, s2, FH)
        wa, ra, za = t, t + 1, t + 3
        k(f"""
        s_lshl_b32 s{sT}, s{sW}, 12
        s_add_u32 s{sT}, s{sT}, {SCR}
        v_lshrrev_b32 v{t+4}, 2, v{vR}
        v_xor_b32 v{wa}, v{t+4}, v{vQ}
        v_lshl_add_u32 v{wa}, v{wa}, 3, s{sT}
        v_and_b32 v{t+5}, 3, v{vR}
        v_lshl_add_u32 v{wa}, v{t+5}, 5, v{wa}
        v_bfe_u32 v{t+6}, v{vR}, 2, 1
        v_lshl_add_u32 v{wa}, v{t+6}, 8, v{wa}
        v_bfe_u32 v{t+6}, v{vR}, 3, 1
        v_lshl_add_u32 v{wa}, v{t+6}, 7, v{wa}
        v_mul_f32 v{s1}, -v{s1}, v{s2}
        v_mov_b32 v{s2+1}, v{s2}
        v_mov_b32 v{s1+1}, v{s1}
        """)
        PK = self.WRING
        for nt in range(7):
            for p in range(2):
                R = Z2 + 4*nt + 2*p
                k(f"v_pk_fma_f32 {vr(R, 2)}, {vr(R, 2)}, {vr(s2, 2)}, {vr(s1, 2)}")
            for p in range(2):
                R = Z2 + 4*nt + 2*p
                k(f"v_cvt_pk_bf16_f32 v{PK + 2*nt + p}, v{R}, v{R+1}")
            k(f"ds_write_b64 v{wa}, {vr(PK + 2*nt, 2)} offset:{512*nt}")
        k(f"""
        v_and_b32 v{t+6}, 1, v{vQ}
        v_lshlrev_b32 v{t+7}, 1, v{t+6}
        v_xor_b32 v{ra}, v{t+5}, v{t+7}
        v_lshl_add_u32 v{ra}, v{ra}, 3, s{sT}
        v_lshl_add_u32 v{ra}, v{t+4}, 5, v{ra}
        v_lshl_add_u32 v{ra}, v{t+6}, 7, v{ra}
        v_lshrrev_b32 v{t+7}, 1, v{vQ}
        v_lshl_add_u32 v{ra}, v{t+7}, 9, v{ra}
        v_xor_b32 v{ra+1}, 8, v{ra}
        v_lshlrev_b32 v{za}, 4, v{vR}
        v_lshl_add_u32 v{za}, v{t+6}, 8, v{za}
        v_lshl_add_u32 v{za}, v{t+7}, 16, v{za}
        s_mul_i32 s{sT}, s{sCB}, {7*65536}
        s_mul_i32 s{sT+1}, s{sL}, {ZSTR}
        s_add_u32 s{sT}, s{sT}, s{sT+1}
        s_add_u32 s{sT+14}, s{sT}, {ZB}
        s_lshl_b32 s{sT+1}, s{sA}, 10
        s_add_u32 s{sT}, s{sT+14}, s{sT+1}
        s_and_b32 s{sT+1}, s{sW}, 1
        s_lshl_b32 s{sT+1}, s{sT+1}, 9
        s_add_u32 s{sT}, s{sT}, s{sT+1}
        s_waitcnt lgkmcnt(0)
        """)
        TR = PK + 16
        for m in range(4):
            for hi in range(2):
                k(f"ds_read_b64_tr_b16 {vr(TR + 4*m + 2*hi, 2)}, v{ra+hi} offset:{1024*m + 256*hi}")
        for m in range(4):
            k(f"s_waitcnt lgkmcnt({6 - 2*m})")
            if m == 3:
                k("s_mov_b32 exec_hi, 0")
            k(f"buffer_store_dwordx4 {vr(TR + 4*m, 4)}, v{za}, s[{SWS}:{SWS+3}], s{sT} offen sc1")
            if m < 3:
                k(f"s_add_u32 s{sT}, s{sT}, 131072")
        k("s_mov_b32 exec_hi, -1")
        k.stamp("z_store")

    RES = 176

    def resid(self):
        k = self
        t = vT
        wa, ad, am, q4, a = t, t+1, t+2, t+3, t+4
        k(f"""
        s_mul_i32 s{sT}, s{sW}, 5120
        s_add_u32 s{sT}, s{sT}, {RED}
        v_mul_u32_u24 v{am}, 320, v{vR}
        v_add_u32 v{am}, s{sT}, v{am}
        v_lshl_add_u32 v{wa}, v{vQ}, 4, v{am}
        """)
        for m in range(5):
            k(f"ds_write_b128 v{wa}, {vr(RING + 4*m, 4)} offset:{64*m}")
        k(f"""
        v_add_u32 v{ad}, 60, v{wa}
        v_lshlrev_b32 v{q4}, 2, v{vQ}
        v_lshlrev_b32 v{a}, 4, v{vQ}
        v_sub_u32 v{am}, v{am}, v{a}
        v_add_u32 v{am}, 124, v{am}
        s_min_u32 s{sT}, s{sCB}, 6
        s_lshl_b32 s{sT}, s{sT}, 6
        s_sub_u32 s{sT}, 224, s{sT}
        s_waitcnt lgkmcnt(0)
        """)
        for x in range(4):
            for T in range(4):
                k(f"""
                s_sub_u32 s{sT+1}, s{sT}, {16*T + x}
                v_cmp_ge_i32 vcc, s{sT+1}, v{q4}
                v_cndmask_b32 v{a+T}, v{am}, v{ad}, vcc
                ds_read_b32 v{self.RES + 4*T + x}, v{a+T} offset:{64*T}
                """)
            if x < 3:
                k(f"v_add_u32 v{ad}, 4, v{ad}\nv_add_u32 v{am}, -4, v{am}")
            if x == 2:
                k("s_waitcnt lgkmcnt(0)")
        k("s_waitcnt lgkmcnt(0)")

    def wout_dma(self):
        k = self
        t = vT + 10
        k(f"""
        v_lshlrev_b32 v{t}, 1, v{vQ}
        v_xor_b32 v{t}, v{t}, v{vL}
        v_and_b32 v{t}, 7, v{t}
        v_lshrrev_b32 v{t+1}, 3, v{vL}
        v_mul_u32_u24 v{t+1}, 896, v{t+1}
        v_lshl_add_u32 v{t}, v{t}, 4, v{t+1}
        s_min_u32 s{sT+5}, s{sCB}, 6
        s_lshl_b32 s{sT+5}, s{sT+5}, 7
        s_mul_i32 s{sT+6}, s{sW}, 7168
        s_add_u32 s{sT+5}, s{sT+5}, s{sT+6}
        s_lshl_b32 s{sT+6}, s{sW}, 10
        """)
        G = []
        for i in range(28):
            G.append(f"s_add_u32 m0, s{sT+6}, {4096*i}\ns_add_u32 s{sT+7}, s{sT+5}, {28672*i}\n"
                     f"buffer_load_dwordx4 v{t}, s[{SWO}:{SWO+3}], s{sT+7} offen lds")
        return G

    def phase_k3(self):
        k = self
        t = vT
        za, wa, ra, ha, hb = t, t+1, t+4, t+5, t+6
        AS = (24, 80)
        RD, HP, BR = 96, 108, 112
        DEPTH = 16
        k(f"""
        s_lshl_b32 s{sT}, s{sW}, 8
        v_lshl_add_u32 v{za}, v{vR}, 4, s{sT}
        v_lshl_add_u32 v{za}, v{vQ}, 13, v{za}
        """)
        q = []
        nload = [0]

        def load():
            i = nload[0]
            if i >= 112:
                return
            nt, kk = divmod(i, 16)
            cp, x = divmod(kk, 8)
            if x % 4 == 0:
                k(f"s_add_u32 s{sT}, s{sT+14}, {(nt*64 + 32*cp + x) * 1024}")
            k(f"buffer_load_dwordx4 {vr(BR + 4*(i % DEPTH), 4)}, v{za}, s[{SWS}:{SWS+3}], s{sT} offen offset:{(x % 4)*1024} sc1")
            q.append(("ld", i))
            nload[0] += 1

        def wait(i):
            pos = q.index(("ld", i))
            k(f"s_waitcnt vmcnt({len(q) - pos - 1})")
            del q[:pos + 1]
        for i in range(DEPTH):
            load()
        k(f"v_lshlrev_b32 v{ha}, 4, v{vL}\nv_lshlrev_b32 v{hb}, 3, v{vL}")
        for m in range(1, 4):
            k(f"""
            s_add_u32 s{sT+1}, s{sW}, {m}
            s_and_b32 s{sT+1}, s{sT+1}, 3
            s_mul_i32 s{sT+1}, s{sT+1}, 3072
            s_add_u32 s{sT+1}, s{sT+1}, {RED + 1024*(m-1)}
            v_add_u32 v{wa+m-1}, s{sT+1}, v{ha}
            """)
        k(f"""
        s_mul_i32 s{sT+1}, s{sW}, 3072
        s_add_u32 s{sT+1}, s{sT+1}, {RED}
        v_add_u32 v{ra}, s{sT+1}, v{ha}
        s_lshl_b32 s{sT+1}, s{sJ}, 2
        s_add_u32 s{sT+1}, s{sT+1}, s{sW}
        s_mul_i32 s{sT+1}, s{sT+1}, 28672
        s_mul_i32 s{sT+2}, s{sL}, {HSTR}
        s_add_u32 s{sT+1}, s{sT+1}, s{sT+2}
        s_add_u32 s{sT+15}, s{sT+1}, {HB}
        s_lshr_b32 s{sT+1}, s{sCB}, 1
        s_mul_i32 s{sT+1}, s{sT+1}, 7168
        s_add_u32 s{sT+1}, s{sT+1}, s{sT+15}
        s_and_b32 s{sT+3}, s{sCB}, 1
        s_lshl_b32 s{sT+2}, s{sT+3}, 9
        s_add_u32 s{sT+2}, s{sT+2}, s{sT+1}
        s_lshl_b32 s{sT+3}, s{sT+3}, 12
        s_add_u32 s{sT+1}, s{sT+1}, s{sT+3}
        """)

        def epi(p):
            a = AS[p % 2]
            o = 12288 * (p % 2)
            z = self.Z1 + 4*p
            hp = HP + 2 * (p % 2)
            st = []
            st.append("\n".join(f"ds_write_b128 v{wa+m-1}, {vr(a + 4*m, 4)} offset:{o}" for m in range(1, 4)))
            st.append("s_waitcnt lgkmcnt(0)\ns_barrier\n" +
                      "\n".join(f"ds_read_b128 {vr(RD + 4*m, 4)}, v{ra} offset:{o + 1024*m}" for m in range(3)))
            st.append("s_waitcnt lgkmcnt(0)\n" + "\n".join(
                f"v_add_f32 v{RD+i}, v{RD+i}, v{RD+4+i}\nv_add_f32 v{RD+8+i}, v{RD+8+i}, v{a+i}" for i in range(4)))
            st.append("\n".join(f"v_add_f32 v{RD+i}, v{RD+i}, v{RD+8+i}\nv_mul_f32 v{RD+i}, v{RD+i}, v{z+i}" for i in range(4)))
            s = f"v_cvt_pk_bf16_f32 v{hp}, v{RD}, v{RD+1}\nv_cvt_pk_bf16_f32 v{hp+1}, v{RD+2}, v{RD+3}"
            store = None
            if p == 6:
                store = f"buffer_store_dwordx2 {vr(HP, 2)}, v{hb}, s[{SWS}:{SWS+3}], s{sT+2} offen offset:3072 sc1"
            elif p % 2:
                store = f"buffer_store_dwordx4 {vr(HP, 4)}, v{ha}, s[{SWS}:{SWS+3}], s{sT+1} offen offset:{1024*(p//2)} sc1"
            st.append((s, store))
            return st

        def emit_step(s):
            if isinstance(s, tuple):
                k(s[0])
                if s[1]:
                    k(s[1])
                    q.append(("st", 0))
            else:
                k(s)
        for p in range(7):
            pend = epi(p - 1) if p else []
            at = {1: 0, 4: 1, 7: 2, 8: 3, 9: 4}
            for kk in range(16):
                i = 16*p + kk
                wait(i)
                if i == 0:
                    k.stamp("k3_first")
                for m in range(4):
                    a = AS[p % 2] + 4*m
                    c = vr(a, 4) if kk else (vr(vBIAS, 4) if m == 0 else "0")
                    k(f"{MF} {vr(a, 4)}, {vr(BR + 4*(i % DEPTH), 4)}, {ar(64*m + 4*kk, 4)}, {c}")
                load()
                if pend and kk in at:
                    emit_step(pend[at[kk]])
        k.stamp("k3_main")
        for s in epi(6):
            emit_step(s)

    def flag(self, add):
        k = self
        t = vT
        k(f"""
        s_lshl_b32 s{sT}, s{sJ}, 2
        s_add_u32 s{sT}, s{sT}, s{sW}
        s_lshl_b32 s{sT}, s{sT}, 7
        s_add_u32 s{sT}, s{sT}, {FL}
        v_and_b32 v{t+14}, 7, v{vL}
        v_lshl_add_u32 v{t+14}, v{t+14}, 2, s{sT}
        s_lshl_b32 s{sT+1}, s{sCB}, 2
        s_add_u32 s{sT}, s{sT}, s{sT+1}
        v_mov_b32 v{t}, s{sT}
        s_lshl_b32 s{sT+9}, s{sL}, 1
        s_add_u32 s{sT+9}, s{sT+9}, {add}
        v_mov_b32 v{t+1}, s{sT+9}
        s_waitcnt vmcnt(0)
        s_mov_b64 exec, 1
        buffer_store_dword v{t+1}, v{t}, s[{SWS}:{SWS+3}], 0 offen sc1
        s_mov_b64 exec, -1
        """)

    def wait_flag(self):
        k = self
        k("s_mov_b64 exec, 0xff")
        k.poll(vT + 14, vT + 15, sT + 9)
        k("s_mov_b64 exec, -1")

    def phase_k4(self):
        k = self
        t = vT
        HF, RG, RES = 24, 196, self.RES
        ha, hb, wa = t, t+1, t+2
        k(f"""
        s_cmp_eq_u32 s{sCB}, 7
        s_cbranch_scc1 k4_skip
        v_lshlrev_b32 v{ha}, 4, v{vL}
        v_lshlrev_b32 v{hb}, 3, v{vL}
        v_lshrrev_b32 v{t+10}, 2, v{vL}
        v_bfe_u32 v{t+11}, v{vL}, 3, 2
        v_and_b32 v{t+12}, 3, v{vL}
        v_lshlrev_b32 v{t+12}, 3, v{t+12}
        v_lshl_add_u32 v{t+12}, v{t+11}, 5, v{t+12}
        v_lshl_add_u32 v{wa}, v{t+10}, 7, v{t+12}
        v_xor_b32 v{wa+1}, 32, v{wa}
        v_xor_b32 v{wa+2}, 64, v{wa}
        v_xor_b32 v{wa+3}, 0x60, v{wa}
        """)
        for T in range(4):
            k(f"v_add_u32 v{wa+4+T}, {14*4096}, v{wa+T}")

        def read(i):
            g, T = divmod(i, 4)
            b = RG + 4 * (i % 8)
            return "\n".join(f"ds_read_b64_tr_b16 {vr(b + 2*hi, 2)}, v{wa + T + 4*(g // 14)} offset:{(g % 14)*4096 + hi*2048}"
                             for hi in range(2))
        for i in range(6):
            k(read(i))
        k.wait_flag()
        k.stamp("k4_flag")
        q = []
        for g in range(28):
            if g % 4 == 0:
                k(f"s_add_u32 s{sT}, s{sT+15}, {1024*g}")
            o = 1024 * (g % 4)
            if g % 7 == 3:
                for hi in range(2):
                    k(f"buffer_load_dwordx2 {vr(HF + 4*g + 2*hi, 2)}, v{hb}, s[{SWS}:{SWS+3}], s{sT} offen offset:{o + 512*hi} sc1")
                    q.append(g)
            else:
                k(f"buffer_load_dwordx4 {vr(HF + 4*g, 4)}, v{ha}, s[{SWS}:{SWS+3}], s{sT} offen offset:{o} sc1")
                q.append(g)
        for g in range(28):
            left = len([x for x in q if x > g])
            for T in range(4):
                i = 4*g + T
                if T % 2 == 0:
                    out = min(i + 5, 111) - (i + 1)
                    k(f"s_waitcnt lgkmcnt({2*out})" if T else f"s_waitcnt vmcnt({left}) lgkmcnt({2*out})")
                k(f"{MF} {vr(RES + 4*T, 4)}, {vr(RG + 4*(i % 8), 4)}, {vr(HF + 4*g, 4)}, {vr(RES + 4*T, 4)}")
                if i + 6 < 112:
                    k(read(i + 6))
        oa = t
        k(f"""
        v_lshl_add_u32 v{oa}, v{vR}, 6, s{sTOK}
        v_mul_u32_u24 v{oa}, 896, v{oa}
        v_and_b32 v{t+1}, 1, v{vQ}
        v_lshl_add_u32 v{oa}, v{t+1}, 5, v{oa}
        v_lshrrev_b32 v{t+1}, 1, v{vQ}
        v_lshl_add_u32 v{oa}, v{t+1}, 4, v{oa}
        s_lshl_b32 s{sT}, s{sCB}, 7
        """)
        for pr in range(2):
            R = RG + 4*pr
            for i in range(4):
                k(f"v_cvt_pk_bf16_f32 v{R+i}, v{RES + 8*pr + 2*i}, v{RES + 8*pr + 2*i + 1}")
            k(f"""
            v_permlane16_swap_b32 v{R}, v{R+2}
            v_permlane16_swap_b32 v{R+1}, v{R+3}
            buffer_store_dwordx4 {vr(R, 4)}, v{oa}, s[{SXD}:{SXD+3}], s{sT} offen offset:{64*pr} sc1
            """)
        k("k4_skip:")
        k.stamp("k4_done")

    def build(self):
        k = self
        k.prologue()
        k.cnt_init()
        k.x_dma()
        k.wd_dma()
        k.prologue2()
        k.m2_gen()
        k(f"""
        s_waitcnt vmcnt(0)
        v_lshlrev_b32 v{vBIAS}, 16, v{vBIAS}
        v_mov_b32 v{vBIAS+1}, v{vBIAS}
        v_mov_b32 v{vBIAS+2}, v{vBIAS}
        v_mov_b32 v{vBIAS+3}, v{vBIAS}
        layer:
        """)
        k.phase_a1()
        k.acc_init()
        k.arrive(True)
        k.stamp("g_arrive")
        k.halt("a1")
        k.a_load()
        k.stamp("a_load")
        k.win_addr()
        for i in range(7):
            for g in k.win_dma(1, i):
                k(g)
        k.coef_gen()
        k.stamp("g_shadow")
        k.wait_cnt(True)
        k.stamp("g_wait")
        k.phase_s1()
        k.phase_z()
        k.resid()
        k.arrive(False)
        k.stamp("z_arrive")
        k.halt("z")
        G = k.wout_dma()
        k.gelu(self.Z1, 28, ["\n".join(G[2*i:2*i+2]) for i in range(14)])
        k("s_waitcnt vmcnt(0)")
        k.stamp("z_shadow")
        k.wait_cnt(False)
        k.stamp("z_wait")
        k.phase_k3()
        k.flag(1)
        k.stamp("h_flag")
        k.halt("k3")
        k.phase_k4()
        k(f"""
        s_cmp_lg_u32 s{sL}, 0
        s_cbranch_scc1 finish
        """)
        k.halt("k4")
        k.flag(2)
        k("s_barrier")
        k.wd_dma()
        k.m2_gen()
        k(f"""
        s_mov_b32 s{SX}, s{SXD}
        s_mov_b32 s{SX+1}, s{SXD+1}
        s_mov_b32 s{SXD}, s{sOUT}
        s_mov_b32 s{SXD+1}, s{sOUT+1}
        s_mov_b32 s{sL}, 1
        """)
        k.stamp("x_shadow")
        k.wait_flag()
        k.stamp("x_flag")
        k.x_dma()
        k("s_branch layer\nfinish:")
        if self.dbg:
            k("s_waitcnt vmcnt(0)")
            k.stamp("end")
            k(f"""
            s_lshl_b32 s{sT}, s2, 2
            s_add_u32 s{sT}, s{sT}, s{sW}
            s_lshl_b32 s{sT}, s{sT}, 8
            s_add_u32 s{sT}, s{sT}, {TS}
            v_lshlrev_b32 v{vT}, 2, v{vL}
            buffer_store_dword v{vTS}, v{vT}, s[{SWS}:{SWS+3}], s{sT} offen
            """)
        k("done:\ns_endpgm\ncodeend:")
        self.L, self.nops = hazard.pad(self.L)
        return self


def generate(path, **kw):
    g = Gen(**kw).build()
    open(path, "w").write(emit([g]))
    return g


if __name__ == "__main__":
    g = generate(sys.argv[1], dbg=len(sys.argv) > 2)
    print("lines", len(g.L), "nop states", g.nops)
```

```python
class VM:
    def __init__(self, k):
        self.k = k
        self.q = []

    def add(self, tag, n=1):
        self.q += [tag] * n

    def reset(self):
        self.q = []

    def count(self, tag):
        if tag not in self.q:
            return None
        pos = len(self.q) - 1 - self.q[::-1].index(tag)
        n = len(self.q) - pos - 1
        self.q = self.q[pos + 1:]
        return n

    def wait(self, tag):
        n = self.count(tag)
        if n is not None:
            assert n <= 63
            self.k(f"s_waitcnt vmcnt({n})")


class Rd:
    def __init__(self, rid, text, after=-1, pre=None):
        self.rid, self.text, self.after, self.pre = rid, text, after, pre


class Fl:
    def __init__(self, text, after=-1, slots=1, vm=None, needs=(), fid=None):
        self.text, self.after, self.slots, self.vm, self.needs, self.fid = text, after, slots, vm, needs, fid


class Mf:
    def __init__(self, text, needs=(), pre=None, fneeds=()):
        self.text, self.needs, self.pre, self.fneeds = text, needs, pre, fneeds


def stream(k, vm, mfs, reads, fills, gap=lambda i: (1, 1), lead=8, maxout=14):
    reads, fills = list(reads), list(fills)
    out = []

    def issue():
        r = reads.pop(0)
        if r.pre:
            r.pre()
        if len(out) >= maxout + 1:
            k(f"s_waitcnt lgkmcnt({maxout})")
            del out[:len(out) - maxout]
        k(r.text)
        out.append(r.rid)

    def need(ids):
        while any(r.rid in ids for r in reads):
            issue()
        pos = [i for i, x in enumerate(out) if x in ids]
        if pos:
            k(f"s_waitcnt lgkmcnt({len(out) - pos[-1] - 1})")
            del out[:pos[-1] + 1]

    def fill():
        f = fills.pop(0)
        need(f.needs)
        k(f.text)
        if f.vm:
            vm.add(f.vm)
        return f.slots

    n = 0
    while reads and n < lead and reads[0].after < 0:
        issue()
        n += 1
    for i, m in enumerate(mfs):
        while any(f.fid in m.fneeds for f in fills):
            assert fills[0].after < i, (fills[0].text, i)
            print("note: forced filler before mfma", i, fills[0].text.split("\n")[-1])
            fill()
        if m.pre:
            m.pre()
        for r in reads:
            if r.rid in m.needs:
                assert r.after < i, (r.text, i)
        need(m.needs)
        k(m.text)
        nr, nf = gap(i)
        while nr > 0 and reads and reads[0].after <= i and len(out) < maxout:
            issue()
            nr -= 1
        nf += nr
        nz = 1
        while fills and fills[0].after <= i and (nf > 0 if fills[0].slots else nz > 0):
            if not fills[0].slots:
                nz -= 1
            nf -= fill()
    while reads:
        issue()
    while fills:
        fill()
    return out
```

```python
import sys
from lib import *
import hazard
from sched import VM, Rd, Fl, Mf, stream

CNT = 0x0
FL = 0x4000
ST = 0x10000
PB = 0x100000
PSTR = 0x100000
ZB = 0x400000
ZSTR = 0x400000
HB = 0xC00000
HSTR = 0x400000
X2 = 0x1400000
WI = 0x1800000
WISTR = 204800
WO = 0x1A00000
TS = 0x2000000
ZCONT = True
XR = 0
CR = 57344
SA = 65536
CSR = 100352
JUNK = 102400
PR = 106496
RED = 114688
SCR = 122880
RSC = 139264
LDS = 163840
SX, SWS, SWD, SWIN, SWSP, SWO, SXD, SMISC = 4, 8, 12, 16, 20, 24, 28, 32
sDM = 38
sG0, sG1, sONE = 46, 48, 50
sOUT = 56
sW, sCB, sJ, sL, sA, sXCD, sTOK, sA1 = 62, 63, 64, 65, 66, 67, 68, 69
sTS, sTI = 70, 72
sHI, sPL, sPH = 73, 74, 75
sT = 76
sWI, sZ, sH, sFT, sW1K, sST, sG, sJK = 86, 87, 88, 89, 90, 91, 92, 93
sSPIN = 98
vL, vR, vQ, vTS, vBIAS = 0, 1, 2, 3, 4
vT = 8
M2 = 24
COEF = 40
vL16, vFP = 56, 57
X0 = 59
ONES = 60
ACC = 64
FREE = 176
RES = 240
MF = "v_mfma_f32_16x16x32_bf16"
SPIN_MAX = 1 << 20


def XN(ks):
    return ACC + 8 * ks


def ZA(part, nt):
    return ACC + 8 * (nt if part else 7 + nt) + 4


class Gen(Kern):
    def __init__(self, dbg=False, stop=None, depth=16, stks=9):
        super().__init__(MAIN, 256, 256, LDS, vgpr=256, agpr=256, sgpr=102)
        self.dbg, self.stop = dbg, stop
        self.depth, self.stks = depth, stks
        self.names = []
        self.vm = VM(self)

    def srd(self, s, base, size):
        self(f"s_mov_b32 s{s}, s{base}\ns_mov_b32 s{s+1}, s{base+1}\ns_mov_b32 s{s+2}, {size}\ns_mov_b32 s{s+3}, 0x00020000")

    def stamp(self, name):
        if not self.dbg:
            return
        self.names.append(name)
        self(f"""
        {"s_memtime" if self.dbg == 2 else "s_memrealtime"} s[{sTS}:{sTS+1}]
        s_waitcnt lgkmcnt(0)
        s_mov_b32 m0, s{sTI}
        v_writelane_b32 v{vTS}, s{sTS}, m0
        s_add_u32 s{sTI}, s{sTI}, 1
        """)

    def halt(self, name):
        if self.stop == name:
            self("s_branch finish")

    def qsum2(self, a, b, t):
        for op in ("v_permlane16_swap_b32", "v_permlane32_swap_b32"):
            self(f"""
            v_mov_b32 v{t}, v{a}
            v_mov_b32 v{t+1}, v{b}
            {op} v{a}, v{t}
            {op} v{b}, v{t+1}
            v_add_f32 v{a}, v{a}, v{t}
            v_add_f32 v{b}, v{b}, v{t+1}
            """)

    @staticmethod
    def meanrstd_ops(s, a, b, n):
        return [f"v_mul_f32 v{a}, {f2u(1.0/n)}, v{s}",
                f"v_mul_f32 v{b}, {f2u(1.0/n)}, v{b}",
                f"v_fma_f32 v{b}, -v{a}, v{a}, v{b}",
                f"v_max_f32 v{b}, 0, v{b}",
                f"v_add_f32 v{b}, {f2u(1e-5)}, v{b}",
                f"v_rsq_f32 v{b}, v{b}"]

    def gram_ops(self, SUM, SQ, a, b, t):
        L = [f"v_cndmask_b32 v{b}, 0, v{SQ}, s[{sDM}:{sDM+1}]"]
        for x in range(1, 4):
            L.append(f"v_cndmask_b32 v{b}, v{b}, v{SQ+x}, s[{sDM+2*x}:{sDM+2*x+1}]")
        for op in ("v_permlane16_swap_b32", "v_permlane32_swap_b32"):
            L += [f"v_mov_b32 v{t}, v{b}", f"{op} v{b}, v{t}", f"v_add_f32 v{b}, v{b}, v{t}"]
        return L + self.meanrstd_ops(SUM, a, b, D)

    def poll(self, vaddr, vdat, starget):
        lab = self.label("poll")
        self(f"""
        s_mov_b32 s{sSPIN}, 0
        {lab}:
        buffer_load_dword v{vdat}, v{vaddr}, s[{SWS}:{SWS+3}], 0 offen sc1
        s_add_u32 s{sSPIN}, s{sSPIN}, 1
        s_cmp_gt_u32 s{sSPIN}, {SPIN_MAX}
        s_cbranch_scc1 {lab}_x
        s_waitcnt vmcnt(0)
        v_cmp_gt_u32 vcc, s{starget}, v{vdat}
        s_cbranch_vccnz {lab}
        {lab}_x:
        """)

    def prologue(self):
        k = self
        k(f"""
        s_cmp_ge_u32 s2, 256
        s_cbranch_scc1 done
        s_load_dwordx16 s[36:51], s[0:1], 0
        s_load_dwordx8 s[52:59], s[0:1], 64
        s_load_dwordx2 s[60:61], s[0:1], 96
        s_getpc_b64 s[{SMISC}:{SMISC+1}]
        codebase:
        s_mov_b32 s{SMISC+2}, codeend-codebase
        s_mov_b32 s{SMISC+3}, 0x00020000
        s_lshr_b32 s{sT}, s2, 3
        v_lshrrev_b32 v{vT}, 6, v0
        v_and_b32 v{vL}, 63, v0
        v_readfirstlane_b32 s{sW}, v{vT}
        v_and_b32 v{vR}, 15, v{vL}
        v_lshrrev_b32 v{vQ}, 4, v{vL}
        s_lshl_b32 s{sT+1}, s{sT}, 2
        s_add_u32 s{sT+1}, s{sT+1}, s{sW}
        s_lshl_b32 s{sT+1}, s{sT+1}, 9
        v_lshl_add_u32 v{vT}, v{vL}, 7, s{sT+1}
        s_mov_b64 exec, 15
        buffer_load_dword v255, v{vT}, s[{SMISC}:{SMISC+3}], 0 offen
        s_mov_b64 exec, -1
        s_mov_b32 s{sTI}, 0
        v_mov_b32 v{vTS}, 0
        v_lshlrev_b32 v{vL16}, 4, v{vL}
        s_and_b32 s{sXCD}, s2, 7
        s_and_b32 s{sCB}, s{sT}, 7
        s_lshr_b32 s{sG}, s{sT}, 3
        s_lshr_b32 s{sT+1}, s{sT}, 4
        s_lshl_b32 s{sT+2}, s{sXCD}, 1
        s_add_u32 s{sT+1}, s{sT+1}, s{sT+2}
        s_sub_u32 s{sT+2}, 32, s{sT+1}
        s_cmp_eq_u32 s{sT+1}, 0
        s_cselect_b32 s{sT+2}, 16, s{sT+2}
        s_bitcmp1_b32 s{sT}, 3
        s_cselect_b32 s{sJ}, s{sT+2}, s{sT+1}
        s_sub_u32 s{sA1}, 64, s{sJ}
        s_cmp_eq_u32 s{sJ}, 0
        s_cselect_b32 s{sA1}, 32, s{sA1}
        s_cmp_ge_u32 s{sW}, 2
        s_cselect_b32 s{sA}, s{sA1}, s{sJ}
        s_and_b32 s{sT+1}, s{sW}, 1
        s_lshl_b32 s{sT+1}, s{sT+1}, 10
        s_add_u32 s{sTOK}, s{sA}, s{sT+1}
        s_mov_b32 s{sL}, 0
        s_lshl_b32 s{sW1K}, s{sW}, 10
        """)
        k.x_addr()
        k.wd_addr()
        k("s_waitcnt lgkmcnt(0)")
        k.srd(SX, 36, SIZE['x'])
        k(f"""
        s_cmp_ge_u32 s{sW}, 2
        s_cselect_b32 s{SWD}, s44, s42
        s_cselect_b32 s{SWD+1}, s45, s43
        s_mov_b32 s{SWD+2}, {SIZE['hre']}
        s_mov_b32 s{SWD+3}, 0x00020000
        """)
        k.stamp("start")

    def first_touch(self):
        k = self
        t = vT + 8
        k(f"""
        v_lshl_add_u32 v{t}, v{vR}, 6, s{sTOK}
        v_mul_u32_u24 v{t}, 896, v{t}
        s_lshl_b32 s{sT}, s{sCB}, 7
        s_mov_b64 exec, 0xffff
        buffer_load_dword v255, v{t}, s[{SX}:{SX+3}], s{sT} offen
        s_mov_b64 exec, -1
        s_lshl_b32 s{sT}, s{sCB}, 5
        s_lshl_b32 s{sT+1}, s{sG}, 3
        s_add_u32 s{sT}, s{sT}, s{sT+1}
        s_and_b32 s{sT+1}, s{sW}, 1
        s_lshl_b32 s{sT+1}, s{sT+1}, 2
        s_add_u32 s{sT}, s{sT}, s{sT+1}
        s_add_u32 s{sT}, s{sT}, 1
        s_mul_i32 s{sT}, s{sT}, 896
        v_lshlrev_b32 v{t}, 7, v{vL}
        s_mov_b64 exec, 0xfffffff
        buffer_load_dword v255, v{t}, s[{SWD}:{SWD+3}], s{sT} offen
        s_mov_b64 exec, -1
        """)

    def init_mem(self):
        k = self
        t = vT + 8
        k.srd(SWS, 60, SIZE['ws'])
        k.srd(SMISC, 52, SIZE['bsp'])
        k(f"""
        v_lshl_add_u32 v{t}, v{vR}, 6, s{sTOK}
        v_lshlrev_b32 v{t}, 1, v{t}
        buffer_load_ushort v{vBIAS}, v{t}, s[{SMISC}:{SMISC+3}], 0 offen
        s_lshl_b32 s{sT}, s{sJ}, 2
        s_add_u32 s{sT}, s{sT}, s{sW}
        s_lshl_b32 s{sST}, s{sT}, 10
        s_add_u32 s{sST}, s{sST}, {ST}
        s_lshl_b32 s{sT+2}, s{sCB}, 7
        s_add_u32 s{sT+1}, s{sST}, s{sT+2}
        v_and_b32 v{t+1}, 31, v{vL}
        v_lshrrev_b32 v{t+2}, 5, v{vL}
        v_lshlrev_b32 v{t+2}, 17, v{t+2}
        v_lshl_add_u32 v{t+1}, v{t+1}, 2, v{t+2}
        v_mov_b32 v{t+2}, -1
        buffer_store_dword v{t+2}, v{t+1}, s[{SWS}:{SWS+3}], s{sT+1} offen sc1
        s_mul_i32 s{sH}, s{sT}, 28672
        s_add_u32 s{sH}, s{sH}, {HB}
        s_lshl_b32 s{sT+1}, s{sT}, 7
        s_add_u32 s{sT+1}, s{sT+1}, {FL}
        v_and_b32 v{vFP}, 7, v{vL}
        v_lshl_add_u32 v{vFP}, v{vFP}, 2, s{sT+1}
        v_mov_b32 v{t+3}, 0
        s_lshl_b64 exec, 1, s{sCB}
        buffer_store_dword v{t+3}, v{vFP}, s[{SWS}:{SWS+3}], 0 offen sc1
        s_mov_b64 exec, -1
        """)
        k.srd(SWSP, 50, SIZE['wsp'])

    def wsp_touch(self):
        k = self
        t = vT + 8
        k(f"""
        v_lshrrev_b32 v{t}, 5, v{vL}
        s_lshl_b32 s{sT}, s{sCB}, 1
        v_add_u32 v{t}, s{sT}, v{t}
        v_lshl_add_u32 v{t}, v{t}, 6, s{sTOK}
        v_and_b32 v{t+1}, 31, v{vL}
        v_lshlrev_b32 v{t+1}, 7, v{t+1}
        v_lshl_add_u32 v{t}, v{t}, 12, v{t+1}
        buffer_load_dword v255, v{t}, s[{SWSP}:{SWSP+3}], 0 offen
        """)

    def consts(self):
        k = self
        k(f"""
        s_add_u32 s{SXD}, s60, {X2}
        s_addc_u32 s{SXD+1}, s61, 0
        s_mov_b32 s{SXD+2}, {SIZE['x']}
        s_mov_b32 s{SXD+3}, 0x00020000
        """)
        k.srd(SMISC, 58, SIZE['dbg'])
        for x in range(4):
            k(f"s_mov_b32 s{sDM+2*x}, {hex((1 << x) | (1 << (20+x)))}\ns_mov_b32 s{sDM+2*x+1}, {hex((1 << (8+x)) | (1 << (28+x)))}")
        k(f"""
        s_mov_b32 s{sHI}, 0xffff0000
        s_mov_b32 s{sPL}, 0x05040100
        s_mov_b32 s{sPH}, 0x07060302
        s_mov_b32 s{sG0}, {f2u(-2.302208198)}
        s_mov_b32 s{sG0+1}, {f2u(-2.302208198)}
        s_mov_b32 s{sG1}, {f2u(-2.302208198*0.044715)}
        s_mov_b32 s{sONE}, 1.0
        s_mov_b32 s{sONE+1}, 1.0
        s_mul_i32 s{sWI}, s{sCB}, {WISTR}
        s_add_u32 s{sWI}, s{sWI}, {WI}
        s_add_u32 s{sWI}, s{sWI}, s{sW1K}
        s_mul_i32 s{sZ}, s{sCB}, {7*65536}
        s_add_u32 s{sZ}, s{sZ}, {ZB}
        s_mov_b32 s{sFT}, 0
        s_cmp_ge_u32 s{sW}, 2
        s_cselect_b32 s{sJK}, {JUNK - 40960}, 0
        s_add_u32 s{sJK}, s{sJK}, 40960
        s_add_u32 s{sJK}, s{sJK}, s{sW1K}
        """)
        for i in range(4):
            k(f"v_mov_b32 v{ONES+i}, 0x3f803f80")

    def cnt_init(self):
        k = self
        t = vT + 8
        k(f"""
        s_lshl_b32 s{sT}, s{sJ}, 2
        s_add_u32 s{sT}, s{sT}, s{sW}
        s_cmp_lg_u32 s{sT}, {31*4}
        s_cbranch_scc1 noinit
        v_lshlrev_b32 v{t}, 7, v{vL}
        v_mov_b32 v{t+1}, 0
        buffer_store_dword v{t+1}, v{t}, s[{SWS}:{SWS+3}], 0 offen sc1
        v_mov_b32 v{t+2}, 1
        s_waitcnt vmcnt(0)
        s_mov_b64 exec, 1
        buffer_store_dword v{t+2}, v{t+1}, s[{SMISC}:{SMISC+3}], 0 offen sc1
        s_mov_b64 exec, -1
        noinit:
        """)

    def dma_chunk(self, v):
        self(f"""
        v_xor_b32 v{v}, v{vL}, v{vQ}
        v_and_b32 v{v}, 7, v{v}
        v_lshlrev_b32 v{v}, 4, v{v}
        v_xor_b32 v{v+1}, 64, v{v}
        """)

    def x_addr(self):
        k = self
        t = vT
        k.dma_chunk(t)
        k(f"""
        v_lshrrev_b32 v{t+2}, 3, v{vL}
        v_lshl_add_u32 v{t+2}, v{t+2}, 6, s{sTOK}
        v_mul_u32_u24 v{t+2}, 896, v{t+2}
        v_add_u32 v{t}, v{t}, v{t+2}
        v_add_u32 v{t+1}, v{t+1}, v{t+2}
        v_add_u32 v{t+1}, {512*896}, v{t+1}
        """)

    def x_dma(self):
        k = self
        k(f"s_mul_i32 m0, s{sW}, 14336")
        for kp in range(7):
            for rh in range(2):
                k(f"buffer_load_dwordx4 v{vT+rh}, s[{SX}:{SX+3}], 0 offen offset:{128*kp} sc1 lds")
                if (kp, rh) != (6, 1):
                    k(f"s_add_u32 m0, m0, {1024 if rh == 0 else 1024-128}")

    def wd_addr(self):
        k = self
        t = vT + 4
        k.dma_chunk(t)
        k(f"""
        s_and_b32 s{sT}, s{sW}, 1
        s_lshl_b32 s{sT}, s{sT}, 3
        s_lshl_b32 s{sT+1}, s{sCB}, 5
        s_add_u32 s{sT}, s{sT}, s{sT+1}
        s_add_u32 s{sT}, s{sT}, 1
        v_lshrrev_b32 v{t+2}, 5, v{vL}
        v_bfe_u32 v{t+3}, v{vL}, 3, 2
        v_lshl_add_u32 v{t+2}, v{t+2}, 4, v{t+3}
        v_add_u32 v{t+2}, s{sT}, v{t+2}
        v_mul_u32_u24 v{t+2}, 896, v{t+2}
        v_add_u32 v{t}, v{t}, v{t+2}
        v_add_u32 v{t+1}, v{t+1}, v{t+2}
        v_add_u32 v{t+1}, {4*896}, v{t+1}
        """)

    def wd_dma(self, kps):
        k = self
        k(f"s_lshl_b32 s{sT}, s{sW}, 11")
        for kp in kps:
            for rh in range(2):
                k(f"s_add_u32 m0, s{sT}, {PR + 8192*kp + 1024*rh - 128*kp}")
                k(f"buffer_load_dwordx4 v{vT+4+rh}, s[{SWD}:{SWD+3}], 0 offen offset:{128*kp} lds")

    def m2_gen(self):
        k = self
        t = FREE
        step, b0, b1, m0_, m1_, c0, c1 = t, t+1, t+2, t+3, t+4, t+5, t+6
        a1, rp = t+10, t+9
        k(f"""
        s_lshl_b32 s{sT}, s{sW}, 3
        v_lshrrev_b32 v{c0}, 1, v{vR}
        v_add_u32 v{c0}, s{sT}, v{c0}
        v_cvt_f32_u32 v{c0}, v{c0}
        v_mul_f32 v{step}, {f2u(1/32)}, v{c0}
        v_and_b32 v{rp}, 1, v{vR}
        v_cvt_f32_u32 v{c1}, v{vQ}
        v_mul_f32 v{c1}, {f2u(8.0)}, v{c1}
        v_mul_f32 v{b0}, v{c1}, v{step}
        s_cmp_eq_u32 s{sJ}, 0
        s_cselect_b32 s{sT+1}, 0.5, 1.0
        s_cselect_b32 s{sT+2}, 0, {f2u(0.25)}
        s_cselect_b32 s{sT+3}, 0, {f2u(0.75)}
        s_cselect_b32 s{sT+4}, 0, -1
        v_fma_f32 v{b1}, s{sT+1}, v{step}, v{b0}
        v_cvt_f32_u32 v{c0}, v{rp}
        v_fma_f32 v{b0}, s{sT+2}, v{c0}, v{b0}
        v_fma_f32 v{b1}, s{sT+3}, v{c0}, v{b1}
        v_add_u32 v{m0_}, -1, v{rp}
        v_sub_u32 v{m1_}, 0, v{rp}
        v_or_b32 v{m0_}, s{sT+4}, v{m0_}
        v_or_b32 v{m1_}, s{sT+4}, v{m1_}
        """)
        for h, (b, m) in enumerate(((b0, m0_), (b1, m1_))):
            for e in range(4):
                d0, d1 = M2 + 4*h + e, M2 + 4*(2 + h) + e
                k(f"""
                v_add_f32 v{a1}, v{b}, v{step}
                v_cos_f32 v{c0}, v{b}
                v_cos_f32 v{c1}, v{a1}
                v_sin_f32 v{c0+2}, v{b}
                v_sin_f32 v{c1+2}, v{a1}
                v_add_f32 v{b}, v{a1}, v{step}
                v_cvt_pk_bf16_f32 v{d0}, v{c0}, v{c1}
                v_cvt_pk_bf16_f32 v{d1}, v{c0+2}, v{c1+2}
                v_and_b32 v{d0}, v{d0}, v{m}
                v_and_b32 v{d1}, v{d1}, v{m}
                """)

    def coef_gen(self):
        k = self
        t = FREE
        tok, st, a, c0, c1 = t, t+1, t+2, t+3, t+4
        k(f"""
        v_lshl_add_u32 v{tok}, v{vR}, 6, s{sTOK}
        v_cvt_f32_u32 v{st}, v{tok}
        v_mul_f32 v{st}, {f2u(1/2048)}, v{st}
        v_cvt_f32_u32 v{a}, v{vQ}
        v_mul_f32 v{a}, 4.0, v{a}
        v_mul_f32 v{a}, v{a}, v{st}
        s_mov_b32 s{sT}, {f2u(13.0)}
        """)
        for ks in range(2):
            for e in range(4):
                d = COEF + 4*ks + e
                k(f"v_cos_f32 v{c0}, v{a}\nv_sin_f32 v{c1}, v{a}")
                k(f"v_add_f32 v{a}, v{a}, v{st}" if e < 3 else f"v_fma_f32 v{a}, s{sT}, v{st}, v{a}")
                k(f"v_cvt_pk_bf16_f32 v{d}, v{c0}, v{c1}\nv_xor_b32 v{d+8}, 0x80000000, v{d}")
        k(f"""
        v_lshlrev_b32 v{c0}, 26, v{tok}
        v_sub_u32 v{c1}, 0, v{tok}
        v_lshlrev_b32 v{c1}, 26, v{c1}
        v_and_b32 v{c0}, 0x80000000, v{c0}
        v_and_b32 v{c1}, 0x80000000, v{c1}
        s_mov_b64 exec, 0xffff
        v_or_b32 v{COEF}, 0x3f803f80, v{c0}
        v_or_b32 v{COEF+8}, 0x3f803f80, v{c1}
        s_mov_b64 exec, -1
        """)

    def repack(self):
        k = self
        t = vT + 4
        F, CS = ACC, ACC + 56
        k.srd(SWIN, 48, SIZE['win'])
        k.srd(SWO, 54, SIZE['wout'])
        k(f"""
        s_cmp_ge_u32 s{sJ}, 28
        s_cbranch_scc1 rp_noload
        v_lshrrev_b32 v{t}, 3, v{vL}
        v_mul_u32_u24 v{t}, 3584, v{t}
        v_and_b32 v{t+1}, 7, v{vL}
        v_lshl_add_u32 v{t}, v{t+1}, 4, v{t}
        s_mul_i32 s{sT}, s{sW}, 28672
        s_lshl_b32 s{sT+1}, s{sJ}, 7
        s_add_u32 s{sT}, s{sT}, s{sT+1}
        """)
        for i in range(14):
            k(f"s_add_u32 m0, s{sW1K}, {PR + 4096*i}")
            k(f"buffer_load_dwordx4 v{t}, s[{SWIN}:{SWIN+3}], s{sT} offen lds")
            k(f"s_add_u32 s{sT}, s{sT}, {4*28672}")
        k(f"s_mul_i32 s{sT}, s{sJ}, 28672\ns_add_u32 s{sT}, s{sT}, s{sW1K}")
        for i in range(7):
            k(f"s_add_u32 m0, s{sW1K}, {SA + 4096*i}")
            k(f"buffer_load_dwordx4 v{vL16}, s[{SWO}:{SWO+3}], s{sT} offen lds")
            k(f"s_add_u32 s{sT}, s{sT}, 4096")
        k("rp_noload:")
        k.init_mem()
        k.consts()
        k.cnt_init()
        k.coef_gen()
        bd, bm, b14, wo = t, t+1, t+2, t+3
        k(f"""
        s_cmp_ge_u32 s{sJ}, 28
        s_cbranch_scc1 rp_done
        v_lshrrev_b32 v{t+4}, 2, v{vL}
        v_and_b32 v{t+5}, 3, v{vL}
        s_lshl_b32 s{sT}, s{sW}, 5
        s_add_u32 s{sT}, s{sT}, {PR}
        v_lshl_add_u32 v{t+6}, v{t+5}, 3, s{sT}
        v_lshl_add_u32 v{bd}, v{t+4}, 7, v{t+6}
        v_add_u32 v{bd}, 128, v{bd}
        v_sub_u32 v{bm}, 15, v{t+4}
        v_lshl_add_u32 v{bm}, v{bm}, 7, v{t+6}
        v_add_u32 v{b14}, {14*2048}, v{bm}
        v_cmp_eq_u32 vcc, 15, v{t+4}
        v_cndmask_b32 v{b14}, v{b14}, v{t+6}, vcc
        v_mul_u32_u24 v{wo}, 896, v{t+4}
        v_lshl_add_u32 v{wo}, v{t+5}, 4, v{wo}
        s_lshr_b32 s{sT}, s{sW}, 1
        s_lshl_b32 s{sT}, s{sT}, 6
        s_and_b32 s{sT+1}, s{sW}, 1
        s_lshl_b32 s{sT+1}, s{sT+1}, 3
        s_add_u32 s{sT}, s{sT}, s{sT+1}
        s_add_u32 s{sT}, s{sT}, {SA}
        v_add_u32 v{wo}, s{sT}, v{wo}
        s_lshl_b32 s{sT}, s{sJ}, 2
        s_add_u32 s{sT}, s{sT}, s{sW}
        s_cmp_ge_u32 s{sT}, 56
        s_cselect_b32 s{sT+1}, 56, 0
        s_cselect_b32 s{sT+2}, 0, {100*1024}
        s_cselect_b32 s{sT+3}, 0, 448
        s_sub_u32 s{sT}, s{sT}, s{sT+1}
        s_mul_i32 s{sT+1}, s{sT}, 37
        s_lshr_b32 s{sT+1}, s{sT+1}, 8
        s_mul_i32 s{sT+4}, s{sT+1}, 7
        s_sub_u32 s{sT}, s{sT}, s{sT+4}
        s_sub_u32 s{sT+4}, s{sT}, 1
        s_cselect_b32 s{sT+4}, 6, s{sT+4}
        s_bitcmp1_b32 s{sT+1}, 0
        s_cselect_b32 s{sT}, s{sT+4}, s{sT}
        s_mul_i32 s{sT+1}, s{sT+1}, {WISTR}
        s_add_u32 s{sT+1}, s{sT+1}, {WI}
        s_lshl_b32 s{sT+4}, s{sT}, 6
        s_add_u32 s{sT+3}, s{sT+3}, s{sT+4}
        s_add_u32 s{sT+3}, s{sT+3}, s{sT+1}
        s_add_u32 s{sT+3}, s{sT+3}, {98*1024}
        s_lshl_b32 s{sT}, s{sT}, 10
        s_add_u32 s{sT}, s{sT}, s{sT+1}
        s_add_u32 s{sT}, s{sT}, s{sT+2}
        s_waitcnt vmcnt(0)
        s_barrier
        """)
        for g in range(2):
            for ks in range(7*g, 7*g + 7):
                for hi in range(2):
                    n = 2*ks + hi
                    v, o = (bd, n*2048) if n < 14 else (b14, 0) if n == 14 else (bm, n*2048)
                    k(f"ds_read_b64_tr_b16 {vr(F + 4*ks + 2*hi, 2)}, v{v} offset:{o}")
            k("s_waitcnt lgkmcnt(0)")
            for ks in range(7*g, 7*g + 7):
                k(f"buffer_store_dwordx4 {vr(F + 4*ks, 4)}, v{vL16}, s[{SWS}:{SWS+3}], s{sT} offen sc1")
                k(f"s_add_u32 s{sT}, s{sT}, 7168")
                k(f"{MF} {vr(CS, 4)}, {vr(F + 4*ks, 4)}, {vr(ONES, 4)}, {vr(CS, 4) if ks else 0}")
        G = CS + 4
        for c in range(7):
            for hi in range(2):
                k(f"ds_read_b64_tr_b16 {vr(G + 4*c + 2*hi, 2)}, v{wo} offset:{128*c + 14336*hi}")
        k(f"""
        s_mov_b32 exec_lo, 0x00010001
        s_mov_b32 exec_hi, 0x00010001
        buffer_store_dwordx4 {vr(CS, 4)}, v{vL}, s[{SWS}:{SWS+3}], s{sT+3} offen sc1
        s_mov_b64 exec, -1
        s_lshl_b32 s{sT}, s{sJ}, 12
        s_add_u32 s{sT}, s{sT}, s{sW1K}
        s_add_u32 s{sT}, s{sT}, {WO}
        s_waitcnt lgkmcnt(0)
        """)
        for c in range(7):
            k(f"buffer_store_dwordx4 {vr(G + 4*c, 4)}, v{vL16}, s[{SWS}:{SWS+3}], s{sT} offen sc1")
            k(f"s_add_u32 s{sT}, s{sT}, 114688")
        k("rp_done:")
        k.x_dma()
        k.wsp_touch()

    def a1_addr(self):
        k = self
        t = vT
        xa, wa, ca, rb, pa, u = t, t+2, t+4, t+5, t+7, t+8
        k(f"""
        v_lshrrev_b32 v{wa}, 1, v{vR}
        v_xor_b32 v{wa}, v{wa}, v{vQ}
        v_lshlrev_b32 v{wa}, 4, v{wa}
        v_lshl_add_u32 v{wa}, v{vR}, 7, v{wa}
        s_mul_i32 s{sT}, s{sW}, 14336
        v_add_u32 v{xa}, s{sT}, v{wa}
        v_xor_b32 v{xa+1}, 64, v{xa}
        v_add_u32 v{wa}, {PR}, v{wa}
        v_xor_b32 v{wa+1}, 64, v{wa}
        v_bfe_u32 v{ca}, v{vR}, 1, 2
        v_lshrrev_b32 v{u}, 3, v{vR}
        v_lshlrev_b32 v{u}, 1, v{u}
        v_xor_b32 v{ca}, v{ca}, v{u}
        v_xor_b32 v{ca}, v{ca}, v{vQ}
        v_lshlrev_b32 v{ca}, 4, v{ca}
        v_lshl_add_u32 v{ca}, v{vR}, 6, v{ca}
        s_add_u32 s{sT}, s{sW1K}, {CR}
        v_add_u32 v{ca}, s{sT}, v{ca}
        v_bfe_u32 v{u}, v{vL}, 1, 1
        v_bfe_u32 v{u+1}, v{vL}, 3, 1
        v_xor_b32 v{u}, v{u}, v{u+1}
        v_and_b32 v{u+1}, 1, v{vQ}
        v_lshl_add_u32 v{u}, v{u+1}, 1, v{u}
        v_and_b32 v{u+1}, 1, v{vL}
        v_lshl_add_u32 v{u}, v{u}, 1, v{u+1}
        v_lshlrev_b32 v{u}, 3, v{u}
        v_bfe_u32 v{u+1}, v{vL}, 2, 2
        v_lshl_add_u32 v{u+1}, v{vQ}, 3, v{u+1}
        v_lshl_add_u32 v{rb}, v{u+1}, 6, v{u}
        v_add_u32 v{rb}, {CR}, v{rb}
        v_xor_b32 v{rb+1}, 32, v{rb}
        s_lshr_b32 s{sT}, s{sJ}, 1
        s_and_b32 s{sT}, s{sT}, 2
        v_xor_b32 v{pa}, s{sT}, v{vQ}
        v_and_b32 v{u}, 1, v{vR}
        v_lshl_add_u32 v{pa}, v{u}, 2, v{pa}
        v_lshlrev_b32 v{pa}, 4, v{pa}
        v_lshrrev_b32 v{u}, 1, v{vR}
        v_mul_u32_u24 v{u}, 28672, v{u}
        v_add_u32 v{pa}, v{pa}, v{u}
        s_mul_i32 s{sT}, s{sW}, {8*28672}
        s_lshl_b32 s{sT+1}, s{sCB}, 12
        s_add_u32 s{sT}, s{sT}, s{sT+1}
        s_lshl_b32 s{sT+1}, s{sJ}, 7
        s_add_u32 s{sT}, s{sT}, s{sT+1}
        s_mul_i32 s{sT+1}, s{sL}, {PSTR}
        s_add_u32 s{sT}, s{sT}, s{sT+1}
        s_add_u32 s{sT+5}, s{sT}, {PB}
        """)

    def phase_a1(self):
        k, vm = self, self.vm
        t = vT
        xa, wa, ca, rb, pa = t, t+2, t+4, t+5, t+7
        mean, rs, tmp = t+8, t+10, t+12
        XF, WRG, A1, SUM, SQ, CF, A2, PK = 64, 120, 168, 184, 188, 192, 224, 232
        k(f"""
        s_cmp_eq_u32 s{sCB}, 7
        s_cbranch_scc1 a1_skip
        """)
        k.a1_addr()
        vm.reset()
        vm.add("wd")
        for kp in range(7):
            vm.add(f"x{kp}", 2)
        vm.add("touch")
        vm.wait("wd")
        k("s_barrier")
        k.stamp("a1_data")
        order = "S0 G0 S1 G1 S2 S3 G2 S4 G3 S5 S6 G4 G5 G6".split()
        mfs, reads, wn, lastuse = [], [], 0, {}
        xr, wr = [], []
        for o in order:
            kp = int(o[1])
            for ks in (2*kp, 2*kp + 1):
                x = XF + 4*ks
                if o[0] == "S":
                    xr.append((len(mfs), Rd(("x", ks), f"ds_read_b128 {vr(x, 4)}, v{xa + ks % 2} offset:{kp*2048}",
                                            after=max(len(mfs) - 6, -1) if kp else -1,
                                            pre=(lambda kp=kp: vm.wait(f"x{kp}")))))
                    mfs.append(Mf(f"{MF} {vr(SUM, 4)}, {vr(ONES, 4)}, {vr(x, 4)}, {vr(SUM, 4) if ks else 0}", [("x", ks)]))
                    mfs.append(Mf(f"{MF} {vr(SQ, 4)}, {vr(x, 4)}, {vr(x, 4)}, {vr(SQ, 4) if ks else 0}"))
                else:
                    for T in range(4):
                        b = WRG + 4 * (wn % 12)
                        wr.append((len(mfs), Rd(("w", wn), f"ds_read_b128 {vr(b, 4)}, v{wa + ks % 2} offset:{kp*8192 + T*2048}",
                                                after=lastuse.get(wn % 12, -1))))
                        lastuse[wn % 12] = len(mfs)
                        mfs.append(Mf(f"{MF} {vr(A1 + 4*T, 4)}, {vr(b, 4)}, {vr(x, 4)}, {vr(A1 + 4*T, 4) if ks else 0}", [("w", wn)]))
                        wn += 1
            if o == "S6":
                fin = len(mfs)
        allr = [r for _, r in wr[:8]] + [r for _, r in sorted(xr + wr[8:], key=lambda z: z[0])]
        fills = [Fl(s, after=fin + 2) for s in k.gram_ops(SUM, SQ, mean, rs, tmp)] + [Fl(f"v_mov_b32 v{rs+1}, v{rs}", after=fin + 2)]
        stream(k, vm, mfs, allr, fills, lead=10)
        for ri in range(2):
            for i in range(4):
                k(f"v_pk_mul_f32 {vr(A1+8*ri+2*i, 2)}, {vr(A1+8*ri+2*i, 2)}, {vr(rs, 2)}")
            for i in range(4):
                k(f"v_cvt_pk_bf16_f32 v{PK+4*ri+i}, v{A1+8*ri+2*i}, v{A1+8*ri+2*i+1}")
            k(f"ds_write_b128 v{ca}, {vr(PK+4*ri, 4)} offset:{4096*ri}")
        k("s_waitcnt lgkmcnt(0)\ns_barrier")
        mfs, reads = [], []
        for ks in range(4):
            for T2 in range(2):
                for hi in range(2):
                    reads.append(Rd((ks, T2), f"ds_read_b64_tr_b16 {vr(CF + 8*ks + 4*T2 + 2*hi, 2)}, v{rb + (T2 ^ hi)} offset:{2048*ks + 256*hi}"))
                mfs.append(Mf(f"{MF} {vr(A2+4*T2, 4)}, {vr(CF + 8*ks + 4*T2, 4)}, {vr(M2 + 4*ks, 4)}, {vr(A2+4*T2, 4) if ks else 0}", [(ks, T2)]))
        stream(k, vm, mfs, reads, [], gap=lambda i: (2, 0), lead=12)
        for i in range(4):
            k(f"v_cvt_pk_bf16_f32 v{RES+i}, v{A2+2*i}, v{A2+2*i+1}")
        k(f"""
        buffer_store_dwordx4 {vr(RES, 4)}, v{pa}, s[{SWS}:{SWS+3}], s{sT+5} offen sc1
        s_branch a1_join
        a1_skip:
        s_waitcnt vmcnt(0)
        s_barrier
        a1_join:
        """)
        k.stamp("a1_pstore")

    AI = 8

    def acc_addr(self):
        k = self
        t = self.AI
        bd, bn, bm, rb, sw, tmp = t, t+4, t+8, t+12, t+13, t+14
        k(f"""
        s_mul_i32 s{sT}, s{sW}, 14336
        v_lshlrev_b32 v{rb}, 7, v{vR}
        v_add_u32 v{rb}, s{sT}, v{rb}
        v_lshrrev_b32 v{sw}, 1, v{vR}
        v_lshlrev_b32 v{sw}, 4, v{sw}
        """)
        for m in range(4):
            k(f"""
            v_lshl_add_u32 v{tmp}, v{vQ}, 3, {32*m if m < 3 else 64}
            """ + (f"v_add_u32 v{tmp}, 32, v{tmp}\n" if m == 3 else "") + f"""
            v_xor_b32 v{bd+m}, v{tmp}, v{sw}
            v_add_u32 v{bd+m}, v{bd+m}, v{rb}
            v_xor_b32 v{bm+m}, 24, v{bd+m}
            v_add_u32 v{tmp}, 8, v{tmp}
            v_lshrrev_b32 v{tmp+1}, 7, v{tmp}
            v_and_b32 v{tmp}, 127, v{tmp}
            v_xor_b32 v{tmp}, v{tmp}, v{sw}
            v_lshl_add_u32 v{tmp}, v{tmp+1}, 11, v{tmp}
            v_add_u32 v{bn+m}, v{tmp}, v{rb}
            """)
        k(f"v_add_u32 v{rb}, v{rb}, v{sw}\nv_mov_b32 v{X0}, 0")
        for n in range(14):
            k(f"v_mov_b32 v{ACC+4*n+3}, 0")

    def acc_reads(self, g):
        k = self
        t = self.AI
        bd, bn, bm, rb = t, t+4, t+8, t+12
        if g == 2:
            k(f"ds_read_u16_d16_hi v{X0}, v{rb}")
        for n in range(7*g, 7*g + 7):
            R = ACC + 4*n
            o = (n // 4) * 2048
            if n < 14:
                k(f"ds_read_b64 {vr(R, 2)}, v{bd + n % 4} offset:{o}")
                k(f"ds_read_u16_d16_hi v{R+3}, v{bn + n % 4} offset:{o}")
            else:
                k(f"ds_read_b64 {vr(R+2, 2)}, v{bm + n % 4} offset:{o}")

    def acc_unpack(self, g):
        k = self
        for n in range(7*g, 7*g + 7):
            R = ACC + 4*n
            if n < 14:
                k(f"""
                v_and_b32 v{R+2}, s{sHI}, v{R+1}
                v_lshlrev_b32 v{R+1}, 16, v{R+1}
                v_and_b32 v{R}, s{sHI}, v{R}
                """)
            else:
                k(f"""
                v_and_b32 v{R}, s{sHI}, v{R+3}
                v_lshlrev_b32 v{R+1}, 16, v{R+3}
                v_lshlrev_b32 v{R+3}, 16, v{R+2}
                v_and_b32 v{R+2}, s{sHI}, v{R+2}
                """)

    def signal(self):
        k = self
        t = FREE + 40
        lab = k.label("arr")
        k(f"""
        s_barrier
        s_cmp_lg_u32 s{sW}, 0
        s_cbranch_scc1 {lab}
        s_lshl_b32 s{sT}, s{sCB}, 7
        v_lshl_add_u32 v{t}, v{vL}, 10, s{sT}
        v_mov_b32 v{t+1}, 1
        s_mov_b64 exec, 0xff
        buffer_atomic_add v{t+1}, v{t}, s[{SWS}:{SWS+3}], 0 offen sc1
        s_mov_b64 exec, -1
        {lab}:
        """)

    def wait_cnt(self, glob):
        k = self
        t = FREE + 42
        lab = k.label("wc")
        k(f"""
        s_cmp_lg_u32 s{sW}, 0
        s_cbranch_scc1 {lab}
        s_lshl_b32 s{sT}, s{sXCD}, 10
        s_lshl_b32 s{sT+1}, s{sL}, 6
        s_add_u32 s{sT+1}, s{sT+1}, {32 if glob else 64}
        """)
        if glob:
            k(f"v_and_b32 v{t}, 7, v{vL}\nv_lshl_add_u32 v{t}, v{t}, 7, s{sT}")
        else:
            k(f"s_lshl_b32 s{sT+2}, s{sCB}, 7\ns_add_u32 s{sT}, s{sT}, s{sT+2}\nv_mov_b32 v{t}, s{sT}")
        k("s_mov_b64 exec, 0xff" if glob else "s_mov_b64 exec, 1")
        k.poll(t, t + 1, sT + 1)
        k(f"""
        s_mov_b64 exec, -1
        {lab}:
        s_barrier
        """)

    AL = FREE + 44

    def a_setup(self):
        k = self
        ra, src, tmp = self.AL, self.AL + 4, self.AL + 5
        k(f"""
        v_xor_b32 v{tmp}, v{vQ}, v{vR}
        v_lshlrev_b32 v{tmp}, 4, v{tmp}
        v_lshl_add_u32 v{ra}, v{vR}, 9, v{tmp}
        v_xor_b32 v{ra+1}, 64, v{ra}
        v_xor_b32 v{ra+2}, 0x80, v{ra}
        v_xor_b32 v{ra+3}, 0xc0, v{ra}
        v_lshrrev_b32 v{tmp}, 5, v{vL}
        v_xor_b32 v{src}, v{vL}, v{tmp}
        v_and_b32 v{src}, 31, v{src}
        v_lshlrev_b32 v{src}, 4, v{src}
        v_lshl_add_u32 v{src}, v{tmp}, 18, v{src}
        s_lshl_b32 s{sT+6}, s{sW}, 13
        s_add_u32 s{sT+7}, s{sT+6}, {PR}
        s_add_u32 s{sT+6}, s{sT+6}, {SA}
        s_mul_i32 s{sT+8}, s{sW}, 14336
        """)

    def a_dma(self, h):
        k = self
        src, tmp = self.AL + 4, self.AL + 5
        m, hh = divmod(h, 2)
        k(f"""
        s_add_u32 s{sT}, s{sW}, {m}
        s_bitcmp1_b32 s{sT}, 1
        s_cselect_b32 s{sT+1}, s{sA1}, s{sJ}
        s_and_b32 s{sT}, s{sT}, 1
        s_lshl_b32 s{sT}, s{sT}, 10
        s_add_u32 s{sT}, s{sT}, s{sT+1}
        s_lshl_b32 s{sT}, s{sT}, 12
        s_add_u32 s{sT}, s{sT}, s{sW1K}
        s_add_u32 s{sT}, s{sT}, {512*hh}
        s_mov_b32 m0, s{sT + 6 + h % 3}
        """)
        for i in range(8):
            k(f"v_xor_b32 v{tmp}, {32*i}, v{src}")
            k(f"buffer_load_dwordx4 v{tmp}, s[{SWSP}:{SWSP+3}], s{sT} offen lds")
            if i < 7:
                k(f"s_add_u32 m0, m0, 1024\ns_add_u32 s{sT}, s{sT}, {128*4096}")
        self.vm.add(f"a{h}", 8)

    def a_proc(self, h):
        k = self
        ra, cur = self.AL, self.AL + 6
        FR, TP = FREE, FREE + 32
        m, hh = divmod(h, 2)
        for i in range(4):
            k(f"v_add_u32 v{cur+i}, s{sT + 6 + h % 3}, v{ra+i}")
        self.vm.wait(f"a{h}")
        for n in range(8):
            k(f"ds_read_b128 {vr(FR + 4*n, 4)}, v{cur + n % 4} offset:{(n // 4)*256}")
        k("s_waitcnt lgkmcnt(0)")
        if h + 3 < 8:
            k.a_dma(h + 3)
        for cp in range(2):
            for x0 in range(0, 8, 2):
                ops = [(x, y) for x in (x0, x0 + 1) for y in range(2)]
                for i, (x, y) in enumerate(ops):
                    lo, hi = FR + 4*(4*y + cp) + x // 2, FR + 4*(4*y + 2 + cp) + x // 2
                    k(f"v_perm_b32 v{TP + i}, v{hi}, v{lo}, s{sPH if x % 2 else sPL}")
                for i, (x, y) in enumerate(ops):
                    k(f"v_accvgpr_write_b32 a{64*m + 4*(8*cp + x) + 2*hh + y}, v{TP + i}")

    def g_shadow(self):
        k, vm = self, self.vm
        t = FREE + 40
        k(f"""
        s_cmp_lg_u32 s{sL}, 0
        s_cbranch_scc1 g_l1
        v_mov_b32 v{t}, 0
        buffer_load_dword v{t+1}, v{t}, s[{SMISC}:{SMISC+3}], 0 offen sc1
        """)
        vm.reset()
        vm.add("p")
        k.a_setup()
        k.a_dma(0)
        k("g_l1:")
        k.acc_addr()
        k.acc_reads(0)
        k(f"""
        s_cmp_lg_u32 s{sL}, 0
        s_cbranch_scc1 g_l2
        """)
        vm.wait("p")
        k(f"""
        v_lshlrev_b32 v{vBIAS}, 16, v{vBIAS}
        v_mov_b32 v{vBIAS+1}, v{vBIAS}
        v_mov_b32 v{vBIAS+2}, v{vBIAS}
        v_mov_b32 v{vBIAS+3}, v{vBIAS}
        s_mov_b32 s{sSPIN}, 0
        g_rdy:
        v_cmp_eq_u32 vcc, 0, v{t+1}
        s_cbranch_vccz g_l3
        s_add_u32 s{sSPIN}, s{sSPIN}, 1
        s_cmp_gt_u32 s{sSPIN}, {SPIN_MAX}
        s_cbranch_scc1 g_l3
        buffer_load_dword v{t+1}, v{t}, s[{SMISC}:{SMISC+3}], 0 offen sc1
        s_waitcnt vmcnt(0)
        s_branch g_rdy
        g_l2:
        s_waitcnt vmcnt(0)
        g_l3:
        """)
        k.signal()
        k.stamp("g_arrive")
        k.halt("a1")
        k(f"""
        s_cmp_lg_u32 s{sL}, 0
        s_cbranch_scc1 g_l4
        """)
        k.a_dma(1)
        k("g_l4:\ns_waitcnt lgkmcnt(0)")
        k.acc_reads(1)
        k.acc_unpack(0)
        k("s_waitcnt lgkmcnt(0)")
        k.acc_reads(2)
        k.acc_reads(3)
        k.acc_unpack(1)
        k("s_waitcnt lgkmcnt(0)")
        k(f"""
        s_cmp_lg_u32 s{sL}, 0
        s_cbranch_scc1 g_l5
        """)
        k.a_dma(2)
        k("g_l5:")
        k.acc_unpack(2)
        k.acc_unpack(3)
        k.s1_addr()
        k(f"""
        s_cmp_lg_u32 s{sL}, 0
        s_cbranch_scc1 g_l6
        """)
        for h in range(8):
            k.a_proc(h)
        k("g_l6:")
        k.stamp("g_shadow")

    def s1_addr(self):
        k = self
        t = vT
        pb, u = t, t + 4
        k(f"""
        v_and_b32 v{u}, 3, v{vL}
        v_and_b32 v{u+1}, 1, v{vQ}
        v_lshl_add_u32 v{u}, v{u+1}, 2, v{u}
        v_lshlrev_b32 v{u}, 3, v{u}
        v_bfe_u32 v{u+1}, v{vL}, 2, 2
        v_lshl_add_u32 v{u+1}, v{vQ}, 3, v{u+1}
        v_lshl_add_u32 v{u}, v{u+1}, 6, v{u}
        s_cmp_ge_u32 s{sW}, 2
        s_cselect_b32 s{sT}, 28672, 0
        s_cselect_b32 s{sT+1}, 0, 28672
        v_add_u32 v{u}, {PR}, v{u}
        v_add_u32 v{pb}, s{sT}, v{u}
        v_xor_b32 v{pb+1}, 32, v{pb}
        v_add_u32 v{pb+2}, s{sT+1}, v{u}
        v_xor_b32 v{pb+3}, 32, v{pb+2}
        v_add_u32 v{t+4}, {7*7168}, v{vL16}
        v_add_u32 v{t+5}, {PR}, v{vL16}
        v_lshlrev_b32 v{t+6}, 4, v{vQ}
        v_add_u32 v{t+6}, {CSR}, v{t+6}
        s_mul_i32 s{sT+5}, s{sL}, {PSTR}
        s_add_u32 s{sT+5}, s{sT+5}, {PB}
        s_add_u32 s{sT+5}, s{sT+5}, s{sW1K}
        s_mul_i32 s{sT+3}, s{sJ}, 28672
        s_add_u32 s{sT+3}, s{sT+3}, s{sT+5}
        s_and_b32 s{sT+4}, s{sA1}, 31
        s_mul_i32 s{sT+4}, s{sT+4}, 28672
        s_add_u32 s{sT+4}, s{sT+4}, s{sT+5}
        """)

    def wi_dma(self, blk, dst, tag, after=-1, m0=None):
        m0 = m0 or f"s_add_u32 m0, s{sW1K}, {dst}"
        return Fl(f"{m0}\ns_add_u32 s{sT+9}, s{sWI}, {blk*1024}\n"
                  f"buffer_load_dwordx4 v{vL16}, s[{SWS}:{SWS+3}], s{sT+9} offen sc1 lds", after=after, vm=tag, slots=0)

    SUM, SQ = FREE + 64, FREE + 68

    def phase_s1(self):
        k, vm = self, self.vm
        pb = vT
        RING = FREE
        SUM, SQ = self.SUM, self.SQ
        vm.reset()
        for cbT in range(7):
            for s in range(2):
                k(f"s_add_u32 m0, s{sW1K}, {PR + s*28672 + cbT*4096}")
                k(f"buffer_load_dwordx4 v{vL16}, s[{SWS}:{SWS+3}], s{sT+3+s} offen sc1 lds")
                if cbT < 6:
                    k(f"s_add_u32 s{sT+3+s}, s{sT+3+s}, 4096")
            vm.add(f"p{cbT}", 2)
        chunk = {0: "p1", 2: "p3", 4: "p6"}

        def sync(cbT):
            def f():
                vm.wait(chunk[cbT])
                k("s_barrier")
                if cbT == 0:
                    k.stamp("s1_data")
            return f
        pairs = [(cbT, mir) for cbT in range(7) for mir in range(2)]
        mfs, reads, cv, lastuse, fn = [], [], [], {}, 0
        first = True

        def stat(ks, which):
            nonlocal first
            x = vr(XN(ks), 4)
            if which == 0:
                return Mf(f"{MF} {vr(SUM, 4)}, {vr(ONES, 4)}, {x}, {0 if first else vr(SUM, 4)}", fneeds=[("xn", ks)])
            m = Mf(f"{MF} {vr(SQ, 4)}, {x}, {x}, {0 if first else vr(SQ, 4)}", fneeds=[("xn", ks)])
            first = False
            return m

        def cvts(ks, after):
            R = XN(ks)
            L = []
            for i in range(4):
                s = f"v_cvt_pk_bf16_f32 v{R+i}, v{R+2*i}, v{R+2*i+1}"
                if ks == 7 and i == 1:
                    s = f"s_mov_b32 exec_lo, 0\ns_mov_b32 exec_hi, 0xffff0000\nv_mov_b32 v{R+3}, v{X0}\ns_mov_b64 exec, -1\n" + s
                L.append(Fl(s, after=after, fid=("xn", ks)))
            return L
        kss = [13 - c if mir else c for c, mir in pairs]
        for i, (cbT, mir) in enumerate(pairs):
            for ks in range(2):
                for half in range(2):
                    T = 2*cbT + half
                    R = ACC + 4 * (27 - T if mir else T)
                    b = RING + 4 * (fn % 8)
                    for hi in range(2):
                        pre = sync(cbT) if (cbT in chunk and (mir, ks, half, hi) == (0, 0, 0, 0)) else None
                        reads.append(Rd(fn, f"ds_read_b64_tr_b16 {vr(b + 2*hi, 2)}, v{pb + 2*mir + half} offset:{cbT*4096 + ks*2048 + hi*256}",
                                        after=lastuse.get(fn % 8, -1), pre=pre))
                    lastuse[fn % 8] = len(mfs)
                    mfs.append(Mf(f"{MF} {vr(R, 4)}, {vr(b, 4)}, {vr(COEF + 8*mir + 4*ks, 4)}, {vr(R, 4)}", [fn]))
                    fn += 1
                if i >= 2:
                    mfs.append(stat(kss[i-2], ks))
            cv += cvts(kss[i], len(mfs) + 1)
        dm = [k.wi_dma(4*i, 4096*i, f"w{i}", after=8 + 3*i) for i in range(25)]
        late = [f for f in cv if f.after >= len(mfs)]
        fills = sorted([f for f in cv if f not in late] + dm, key=lambda f: f.after)
        stream(k, vm, mfs, reads, fills, gap=lambda i: (2, 1) if i < 8 else (2, 0) if i % 3 == 1 else (1, 1), lead=12)
        k.stamp("s1_done")
        return late, [stat(kss[12], 0), stat(kss[12], 1), stat(kss[13], 0), stat(kss[13], 1)]

    def zgemm(self, part, fills, sync, pre_mfs=(), order=None):
        k, vm = self, self.vm
        t = vT
        RING = FREE
        mfs, reads, lastuse = [], [], {}
        pre_mfs = list(pre_mfs)
        i = 0
        for ks in range(14):
            for nt in range(7):
                if part:
                    v, o = (vL16, ks*7168) if ks < 7 else (t + 4, (ks - 7)*7168)
                else:
                    v, o = (t + 5, ks*7168) if ks < 8 else (vL16, (ks - 8)*7168)
                b = RING + 4 * (i % 10)
                reads.append(Rd(i, f"ds_read_b128 {vr(b, 4)}, v{v} offset:{o + 1024*nt}", after=lastuse.get(i % 10, -1),
                                pre=sync.get(ks) if nt == 0 else None))
                lastuse[i % 10] = len(mfs)
                a = vr(ZA(part, nt), 4)
                mfs.append(Mf(f"{MF} {a}, {vr(b, 4)}, {vr(XN(ks), 4)}, {a if ks else 0}", [i], fneeds=[("xn", ks)]))
                i += 1
            if ks == 1:
                mfs += pre_mfs
        CSV = RING + 40
        for nt in range(6):
            reads.append(Rd(("cs", nt), f"ds_read_b128 {vr(CSV + 4*nt, 4)}, v{t+6} offset:{(0 if part else 448) + 64*nt}", after=60))
        reads.append(Rd(("cs", 6), f"ds_read_b128 {vr(RING + 8, 4)}, v{t+6} offset:{(0 if part else 448) + 64*6}", after=lastuse[2]))
        stream(k, vm, mfs, reads, fills, lead=8, maxout=9)

    NM, RS = vT + 8, vT + 10

    def zfix(self, part):
        k = self
        k("s_waitcnt lgkmcnt(0)")
        for nt in range(7):
            c = FREE + 40 + 4*nt if nt < 6 else FREE + 8
            for p in range(2):
                R = ZA(part, nt) + 2*p
                k(f"v_pk_fma_f32 {vr(R, 2)}, {vr(c + 2*p, 2)}, {vr(self.NM, 2)}, {vr(R, 2)}")
            for p in range(2):
                R = ZA(part, nt) + 2*p
                k(f"v_pk_mul_f32 {vr(R, 2)}, {vr(R, 2)}, {vr(self.RS, 2)}")

    def gelu(self, part, extra=(), stats=None):
        k = self
        T, C = FREE, FREE + 4
        extra = list(extra)
        k(f"v_mov_b32 v{C}, s{sG1}\nv_mov_b32 v{C+1}, s{sG1}")

        def ex():
            if extra:
                f = extra.pop(0)
                k(f.text)
                self.vm.add(f.vm)
        for nt in range(7):
            R = ZA(part, nt)
            for p in (0, 2):
                k(f"v_pk_mul_f32 {vr(T+p, 2)}, {vr(R+p, 2)}, {vr(R+p, 2)}")
            for p in (0, 2):
                k(f"v_pk_fma_f32 {vr(T+p, 2)}, {vr(T+p, 2)}, {vr(C, 2)}, s[{sG0}:{sG0+1}]")
            for p in (0, 2):
                k(f"v_pk_mul_f32 {vr(T+p, 2)}, {vr(T+p, 2)}, {vr(R+p, 2)}")
            for i in range(4):
                k(f"v_exp_f32 v{T+i}, v{T+i}")
            ex()
            for p in (0, 2):
                k(f"v_pk_add_f32 {vr(T+p, 2)}, {vr(T+p, 2)}, s[{sONE}:{sONE+1}]")
            for i in range(4):
                k(f"v_rcp_f32 v{T+i}, v{T+i}")
            ex()
            for p in (0, 2):
                k(f"v_pk_mul_f32 {vr(R+p, 2)}, {vr(R+p, 2)}, {vr(T+p, 2)}")
            if stats:
                s1, s2 = stats
                if nt == 0:
                    k(f"v_pk_add_f32 {vr(s1, 2)}, {vr(R, 2)}, {vr(R+2, 2)}")
                    k(f"v_pk_mul_f32 {vr(s2, 2)}, {vr(R, 2)}, {vr(R, 2)}")
                    k(f"v_pk_fma_f32 {vr(s2, 2)}, {vr(R+2, 2)}, {vr(R+2, 2)}, {vr(s2, 2)}")
                else:
                    for p in (0, 2):
                        k(f"v_pk_add_f32 {vr(s1, 2)}, {vr(s1, 2)}, {vr(R+p, 2)}")
                        k(f"v_pk_fma_f32 {vr(s2, 2)}, {vr(R+p, 2)}, {vr(R+p, 2)}, {vr(s2, 2)}")
        while extra:
            ex()

    def phase_z(self, late, stat_mfs):
        k, vm = self, self.vm
        t = vT
        NM, RS = self.NM, self.RS
        s1, s2, sa = t + 12, t + 14, t + 7
        wa, ra, za = t, t + 1, t + 3
        u = FREE + 72

        def bar(tag):
            def f():
                vm.wait(tag)
                k("s_barrier")
            return f
        fills = [Fl(f.text, fid=f.fid) for f in late]
        g = k.gram_ops(self.SUM, self.SQ, NM, RS, u)
        g += [f"v_sub_f32 v{NM}, 0, v{NM}", f"v_mov_b32 v{NM+1}, v{NM}", f"v_mov_b32 v{RS+1}, v{RS}"]
        b1 = [k.wi_dma(100 + 4*i, PR + 4096*i, "b1", after=4 + 4*i) for i in range(14)]
        fills += sorted([Fl(s, after=22 + 2*i) for i, s in enumerate(g)] + b1, key=lambda f: f.after)
        b2 = [k.wi_dma(156 + 4*i, 4096*i, "b2", after=68 + 5*i) for i in range(10)]
        b2.append(k.wi_dma(196, 0, "b2", m0=f"s_mov_b32 m0, s{sJK}"))
        addr = f"""
        v_lshlrev_b32 v{sa}, 3, v{vR}
        v_lshrrev_b32 v{u}, 2, v{vR}
        v_xor_b32 v{wa}, v{u}, v{vQ}
        v_lshl_add_u32 v{wa}, v{wa}, 3, s{sT}
        v_and_b32 v{u+1}, 3, v{vR}
        v_lshl_add_u32 v{wa}, v{u+1}, 5, v{wa}
        v_bfe_u32 v{u+2}, v{vR}, 2, 1
        v_lshl_add_u32 v{wa}, v{u+2}, 8, v{wa}
        v_bfe_u32 v{u+2}, v{vR}, 3, 1
        v_lshl_add_u32 v{wa}, v{u+2}, 7, v{wa}
        v_and_b32 v{u+2}, 1, v{vQ}
        v_lshlrev_b32 v{u+3}, 1, v{u+2}
        v_xor_b32 v{ra}, v{u+1}, v{u+3}
        v_lshl_add_u32 v{ra}, v{ra}, 3, s{sT}
        v_lshl_add_u32 v{ra}, v{u}, 5, v{ra}
        v_lshl_add_u32 v{ra}, v{u+2}, 7, v{ra}
        v_lshrrev_b32 v{u+3}, 1, v{vQ}
        v_lshl_add_u32 v{ra}, v{u+3}, 9, v{ra}
        v_xor_b32 v{ra+1}, 8, v{ra}
        v_lshlrev_b32 v{za}, 4, v{vR}
        v_lshl_add_u32 v{za}, v{u+2}, 14, v{za}
        v_lshl_add_u32 v{za}, v{u+3}, 16, v{za}
        """.strip().split("\n")
        fills += sorted([Fl(s.strip(), after=62 + i) for i, s in enumerate(addr)] + b2[:6], key=lambda f: f.after)
        k(f"""
        s_lshl_b32 s{sT}, s{sW}, 12
        s_add_u32 s{sT}, s{sT}, {SCR}
        s_lshl_b32 s{sT+1}, s{sCB}, 7
        s_add_u32 s{sT+1}, s{sT+1}, s{sST}
        s_lshr_b32 s{sT+2}, s{sA}, 5
        s_lshl_b32 s{sT+2}, s{sT+2}, 3
        s_and_b32 s{sT+3}, s{sA}, 7
        s_add_u32 s{sT+2}, s{sT+2}, s{sT+3}
        s_lshl_b32 s{sT+2}, s{sT+2}, 2
        s_bfe_u32 s{sT+3}, s{sA}, 0x20003
        s_add_u32 s{sT+2}, s{sT+2}, s{sT+3}
        s_lshl_b32 s{sT+2}, s{sT+2}, 8
        s_and_b32 s{sT+3}, s{sW}, 1
        s_lshl_b32 s{sT+3}, s{sT+3}, 15
        s_add_u32 s{sT+2}, s{sT+2}, s{sT+3}
        s_add_u32 s{sT+2}, s{sT+2}, s{sZ}
        """)
        k.zgemm(1, fills, {0: bar("w6"), 4: bar("w15"), 9: bar("w24")}, pre_mfs=stat_mfs)
        k.stamp("z2_gemm")
        k.zfix(1)
        k.gelu(1, b2[6:], (s1, s2))
        k(f"v_add_f32 v{s1}, v{s1}, v{s1+1}\nv_add_f32 v{s1+1}, v{s2}, v{s2+1}")
        k.qsum2(s1, s1 + 1, s2)
        k(f"""
        v_and_b32 v{s1}, -2, v{s1}
        v_and_b32 v{s1+1}, -2, v{s1+1}
        s_mov_b64 exec, 0xffff
        buffer_store_dwordx2 {vr(s1, 2)}, v{sa}, s[{SWS}:{SWS+3}], s{sT+1} offen sc1
        s_mov_b64 exec, -1
        v_lshl_add_u32 v{sa}, v{vQ}, 8, v{sa}
        """)
        vm.add("pub")
        k.stamp("z2_pub")
        ld = (f"buffer_load_dwordx2 {vr(s1, 2)}, v{sa}, s[{SWS}:{SWS+3}], s{sST} offen sc1\n"
              f"buffer_load_dwordx2 {vr(s2, 2)}, v{sa}, s[{SWS}:{SWS+3}], s{sST} offen offset:128 sc1")
        k.zgemm(0, [Fl(ld, after=7*self.stks)], {0: bar("b1"), 8: bar("b2")})
        k.stamp("z1_gemm")
        lab = k.label("st")
        k(f"""
        s_mov_b32 s{sSPIN}, 0
        {lab}:
        s_waitcnt vmcnt(0)
        v_max_u32 v{u}, v{s1}, v{s1+1}
        v_max3_u32 v{u}, v{u}, v{s2}, v{s2+1}
        v_cmp_eq_u32 vcc, -1, v{u}
        s_cbranch_vccz {lab}_x
        s_add_u32 s{sSPIN}, s{sSPIN}, 1
        s_cmp_gt_u32 s{sSPIN}, {SPIN_MAX}
        s_cbranch_scc1 {lab}_x
        {ld}
        s_branch {lab}
        {lab}_x:
        v_add_f32 v{s1}, v{s1}, v{s2}
        v_add_f32 v{s2}, v{s1+1}, v{s2+1}
        """)
        vm.reset()
        k.stamp("z_stats")
        k.qsum2(s1, s2, u)
        for s in k.meanrstd_ops(s1, s1, s2, FH):
            k(s)
        k(f"""
        v_mul_f32 v{s1}, -v{s1}, v{s2}
        v_mov_b32 v{s2+1}, v{s2}
        v_mov_b32 v{s1+1}, v{s1}
        """)
        for nt in range(7):
            R = ZA(1, nt)
            for p in (0, 2):
                k(f"v_pk_fma_f32 {vr(R+p, 2)}, {vr(R+p, 2)}, {vr(s2, 2)}, {vr(s1, 2)}")
            for p in range(2):
                k(f"v_cvt_pk_bf16_f32 v{R+p}, v{R+2*p}, v{R+2*p+1}")
            k(f"ds_write_b64 v{wa}, {vr(R, 2)} offset:{512*nt}")
        k("s_waitcnt lgkmcnt(0)")
        TR = FREE + 16
        for m in range(4):
            for hi in range(2):
                k(f"ds_read_b64_tr_b16 {vr(TR + 4*m + 2*hi, 2)}, v{ra+hi} offset:{1024*m + 256*hi}")
        for m in range(4):
            k(f"s_waitcnt lgkmcnt({6 - 2*m})")
            if m == 3:
                k("s_mov_b32 exec_hi, 0")
            k(f"buffer_store_dwordx4 {vr(TR + 4*m, 4)}, v{za}, s[{SWS}:{SWS+3}], s{sT+2} offen sc1")
            if m < 3:
                k(f"s_add_u32 s{sT+2}, s{sT+2}, 131072")
        k("s_mov_b32 exec_hi, -1")
        vm.add("z", 4)
        k.stamp("z_store")

    def wo_dma(self, g):
        return Fl(f"s_add_u32 m0, s{sW1K}, {4096*g}\ns_add_u32 s{sT+9}, s{sT+8}, {4096*g}\n"
                  f"buffer_load_dwordx4 v{vL16}, s[{SWS}:{SWS+3}], s{sT+9} offen sc1 lds", vm="wo")

    def resid(self, extra):
        k = self
        t = vT
        wa, ad, am, q8, a = t, t+1, t+2, t+3, t+4
        T0 = FREE + 8
        extra = list(extra)
        k(f"""
        s_min_u32 s{sT}, s{sCB}, 6
        s_lshl_b32 s{sT+1}, s{sT}, 4
        s_set_gpr_idx_on s{sT+1}, gpr_idx(SRC0)
        """)
        for i, o in enumerate((-6, -5, 0, 1, 2, 3, 8, 9, 10, 11)):
            k(f"v_mov_b32 v{T0+i}, v{ACC+o}")
        k(f"""
        s_set_gpr_idx_off
        s_lshl_b32 s{sT}, s{sT}, 6
        s_sub_u32 s{sT}, 224, s{sT}
        s_mul_i32 s{sT+1}, s{sW}, 2560
        s_add_u32 s{sT+1}, s{sT+1}, {RSC}
        v_mul_u32_u24 v{am}, 160, v{vR}
        v_add_u32 v{am}, s{sT+1}, v{am}
        v_lshlrev_b32 v{q8}, 3, v{vQ}
        v_add_u32 v{wa}, v{q8}, v{am}
        """)
        for m in range(5):
            k(f"ds_write_b64 v{wa}, {vr(T0 + 2*m, 2)} offset:{32*m}")
        k(f"""
        v_lshl_add_u32 v{ad}, v{q8}, 1, v{am}
        v_add_u32 v{ad}, 30, v{ad}
        v_xor_b32 v{a}, 8, v{q8}
        v_lshl_add_u32 v{am}, v{a}, 1, v{am}
        v_add_u32 v{am}, 46, v{am}
        """)
        for i in range(16):
            k(f"v_mov_b32 v{RES+i}, 0")
        k("s_waitcnt lgkmcnt(0)")
        for y in range(8):
            for T2 in range(2):
                k(f"""
                s_sub_u32 s{sT+1}, s{sT}, {32*T2 + y}
                v_cmp_ge_i32 vcc, s{sT+1}, v{q8}
                v_cndmask_b32 v{a+T2}, v{am}, v{ad}, vcc
                ds_read_u16_d16_hi v{RES + 8*T2 + y}, v{a+T2} offset:{64*T2}
                """)
            if y < 7:
                k(f"v_add_u32 v{ad}, 2, v{ad}\nv_add_u32 v{am}, -2, v{am}")
            if y == 6:
                k("s_waitcnt lgkmcnt(0)")
            if extra:
                k(extra.pop(0).text)
        assert not extra
        k("s_waitcnt lgkmcnt(0)")

    def z_shadow(self):
        k, vm = self, self.vm
        k(f"""
        s_min_u32 s{sT+8}, s{sCB}, 6
        s_mul_i32 s{sT+8}, s{sT+8}, 114688
        s_add_u32 s{sT+8}, s{sT+8}, s{sW1K}
        s_add_u32 s{sT+8}, s{sT+8}, {WO}
        """)
        early = list(range(11, 17))
        for g in early:
            k(k.wo_dma(g).text)
            vm.add("wo")
        k.zfix(0)
        vm.wait("z")
        k.signal()
        k.stamp("z_arrive")
        k.halt("z")
        rest = [k.wo_dma(g) for g in range(28) if g not in early]
        k.gelu(0, rest[:14])
        k.resid(rest[14:])
        k.k3_addr()
        k.stamp("z_shadow")

    def k3_addr(self):
        k = self
        t = vT
        za, wa, ra, hb = t, t+1, t+4, t+6
        k(f"""
        s_lshl_b32 s{sT}, s{sW}, 14
        v_add_u32 v{za}, s{sT}, v{vL16}
        v_lshlrev_b32 v{hb}, 3, v{vL}
        """)
        for m in range(1, 4):
            k(f"""
            s_add_u32 s{sT+1}, s{sW}, {m}
            s_and_b32 s{sT+1}, s{sT+1}, 3
            s_mul_i32 s{sT+1}, s{sT+1}, 3072
            s_add_u32 s{sT+1}, s{sT+1}, {RED + 1024*(m-1)}
            v_add_u32 v{wa+m-1}, s{sT+1}, v{vL16}
            """)
        k(f"""
        s_mul_i32 s{sT+1}, s{sW}, 3072
        s_add_u32 s{sT+1}, s{sT+1}, {RED}
        v_add_u32 v{ra}, s{sT+1}, v{vL16}
        s_lshr_b32 s{sT+4}, s{sCB}, 1
        s_mul_i32 s{sT+4}, s{sT+4}, 7168
        s_add_u32 s{sT+4}, s{sT+4}, s{sH}
        s_and_b32 s{sT+3}, s{sCB}, 1
        s_lshl_b32 s{sT+5}, s{sT+3}, 9
        s_add_u32 s{sT+5}, s{sT+5}, s{sT+4}
        s_lshl_b32 s{sT+3}, s{sT+3}, 12
        s_add_u32 s{sT+4}, s{sT+4}, s{sT+3}
        """)

    def phase_k3(self):
        k, vm = self, self.vm
        t = vT
        za, wa, ra, hb = t, t+1, t+4, t+6
        AS = (64, 80)
        RD, HP, BR = 96, 108, FREE
        DEPTH = self.depth
        vm.reset()
        nload = [0]

        def load():
            i = nload[0]
            if i >= 112:
                return
            nt, kk = divmod(i, 16)
            if kk % 4 == 0:
                k(f"s_add_u32 s{sT}, s{sZ}, {(nt*64 + kk) * 1024}")
            k(f"buffer_load_dwordx4 {vr(BR + 4*(i % DEPTH), 4)}, v{za}, s[{SWS}:{SWS+3}], s{sT} offen offset:{(kk % 4)*1024} sc1")
            vm.add(("ld", i))
            nload[0] += 1
        for i in range(DEPTH):
            load()

        def epi(p):
            a = AS[p % 2]
            o = 12288 * (p % 2)
            z = ZA(0, p)
            hp = HP + 2 * (p % 2)
            st = [f"ds_write_b128 v{wa+m-1}, {vr(a + 4*m, 4)} offset:{o}" for m in range(1, 4)]
            st += [None] * 9
            st.append(f"s_waitcnt lgkmcnt(0)\ns_barrier\nds_read_b128 {vr(RD, 4)}, v{ra} offset:{o}")
            st += [f"ds_read_b128 {vr(RD + 4*m, 4)}, v{ra} offset:{o + 1024*m}" for m in (1, 2)]
            st += [None] * 6
            for i in range(4):
                st.append(("s_waitcnt lgkmcnt(0)\n" if i == 0 else "") +
                          f"v_add_f32 v{RD+i}, v{RD+i}, v{RD+4+i}\nv_add_f32 v{RD+8+i}, v{RD+8+i}, v{a+i}")
            for i in range(0, 4, 2):
                st.append(f"v_add_f32 v{RD+i}, v{RD+i}, v{RD+8+i}\nv_add_f32 v{RD+i+1}, v{RD+i+1}, v{RD+9+i}")
            for i in range(0, 4, 2):
                st.append(f"v_mul_f32 v{RD+i}, v{RD+i}, v{z+i}\nv_mul_f32 v{RD+i+1}, v{RD+i+1}, v{z+i+1}")
            st.append(f"v_cvt_pk_bf16_f32 v{hp}, v{RD}, v{RD+1}\nv_cvt_pk_bf16_f32 v{hp+1}, v{RD+2}, v{RD+3}")
            if p == 6:
                st.append(f"buffer_store_dwordx2 {vr(HP, 2)}, v{hb}, s[{SWS}:{SWS+3}], s{sT+5} offen offset:3072 sc1")
            elif p % 2:
                st.append(f"buffer_store_dwordx4 {vr(HP, 4)}, v{vL16}, s[{SWS}:{SWS+3}], s{sT+4} offen offset:{1024*(p//2)} sc1")
            return st

        def step(s):
            if s:
                k(s)
                if s.startswith("buffer_store"):
                    vm.add("st")
        for p in range(7):
            pend = [None] * 5 + epi(p - 1) if p else []
            for kk in range(16):
                i = 16*p + kk
                vm.wait(("ld", i))
                if i == 0:
                    k.stamp("k3_first")
                for m in range(4):
                    a = AS[p % 2] + 4*(3 - m)
                    c = vr(a, 4) if kk else (vr(vBIAS, 4) if m == 3 else "0")
                    k(f"{MF} {vr(a, 4)}, {vr(BR + 4*(i % DEPTH), 4)}, {ar(64*(3 - m) + 4*kk, 4)}, {c}")
                    if m == 3:
                        load()
                    elif pend:
                        step(pend.pop(0))
            assert not pend
        k.stamp("k3_main")
        e = epi(6)
        for s in e[2::-1] + e[3:]:
            step(s)

    def flag(self):
        k = self
        t = FREE + 40
        k(f"""
        s_add_u32 s{sFT}, s{sFT}, 1
        v_mov_b32 v{t}, s{sFT}
        s_waitcnt vmcnt(0)
        s_lshl_b64 exec, 1, s{sCB}
        buffer_store_dword v{t}, v{vFP}, s[{SWS}:{SWS+3}], 0 offen sc1
        s_mov_b64 exec, -1
        """)

    def wait_flag(self):
        k = self
        k("s_mov_b64 exec, 0xff")
        k.poll(vFP, FREE + 41, sFT)
        k("s_mov_b64 exec, -1")

    def phase_k4(self):
        k, vm = self, self.vm
        t = vT
        HF, RG = ACC, FREE
        hb, w2, oa = t+8, t+9, t+10
        k(f"""
        s_barrier
        s_cmp_eq_u32 s{sCB}, 7
        s_cbranch_scc1 k4_skip
        s_cmp_lg_u32 s{sL}, 0
        s_cbranch_scc1 k4_nowd
        """)
        k.wd_addr()
        k.wd_dma(range(1, 7))
        k(f"""
        k4_nowd:
        v_lshlrev_b32 v{hb}, 3, v{vL}
        v_add_u32 v{w2}, {14*4096}, v{vL16}
        v_lshl_add_u32 v{oa}, v{vR}, 6, s{sTOK}
        v_mul_u32_u24 v{oa}, 896, v{oa}
        v_lshl_add_u32 v{oa}, v{vQ}, 4, v{oa}
        s_lshl_b32 s{sT+1}, s{sCB}, 7
        """)
        k.wait_flag()
        k.stamp("k4_flag")
        vm.reset()
        for g in range(28):
            if g % 4 == 0:
                k(f"s_add_u32 s{sT}, s{sH}, {1024*g}")
            o = 1024 * (g % 4)
            if g % 7 == 3:
                for hi in range(2):
                    k(f"buffer_load_dwordx2 {vr(HF + 4*g + 2*hi, 2)}, v{hb}, s[{SWS}:{SWS+3}], s{sT} offen offset:{o + 512*hi} sc1")
                vm.add(g, 2)
            else:
                k(f"buffer_load_dwordx4 {vr(HF + 4*g, 4)}, v{vL16}, s[{SWS}:{SWS+3}], s{sT} offen offset:{o} sc1")
                vm.add(g)
            if g == 11:
                break
        mfs, reads, fills, lastuse = [], [], [], {}
        for g in range(12, 28):
            s = f"s_add_u32 s{sT}, s{sH}, {1024*g}\n" if g % 4 == 0 else ""
            o = 1024 * (g % 4)
            if g % 7 == 3:
                for hi in range(2):
                    fills.append(Fl((s if hi == 0 else "") + f"buffer_load_dwordx2 {vr(HF + 4*g + 2*hi, 2)}, v{hb}, s[{SWS}:{SWS+3}], s{sT} offen offset:{o + 512*hi} sc1",
                                    after=4*(g - 12), vm=g, slots=0, fid=g))
            else:
                fills.append(Fl(s + f"buffer_load_dwordx4 {vr(HF + 4*g, 4)}, v{vL16}, s[{SWS}:{SWS+3}], s{sT} offen offset:{o} sc1",
                                after=4*(g - 12), vm=g, slots=0, fid=g))
        for i in range(112):
            g, T = divmod(i, 4)
            b = RG + 4 * (i % 10)
            v, o = (vL16, g*4096) if g < 14 else (w2, (g - 14)*4096)
            reads.append(Rd(i, f"ds_read_b128 {vr(b, 4)}, v{v} offset:{o + 1024*T}", after=lastuse.get(i % 10, -1)))
            lastuse[i % 10] = i
            mfs.append(Mf(f"{MF} {vr(RES + 4*T, 4)}, {vr(b, 4)}, {vr(HF + 4*g, 4)}, {vr(RES + 4*T, 4)}", [i],
                          pre=(lambda g=g: vm.wait(g)) if T == 0 else None, fneeds=[g]))
        stream(k, vm, mfs, reads, fills, lead=9, maxout=9)
        for pr in range(2):
            R = RG + 4*pr
            for i in range(4):
                k(f"v_cvt_pk_bf16_f32 v{R+i}, v{RES + 8*pr + 2*i}, v{RES + 8*pr + 2*i + 1}")
            k(f"buffer_store_dwordx4 {vr(R, 4)}, v{oa}, s[{SXD}:{SXD+3}], s{sT+1} offen offset:{64*pr} sc1")
        k("k4_skip:")
        k.stamp("k4_done")

    def build(self):
        k = self
        k.prologue()
        k(f"s_cmp_eq_u32 s{sCB}, 7\ns_cbranch_scc1 rp_entry")
        k.first_touch()
        k.init_mem()
        k.wd_dma(range(7))
        k.x_dma()
        k.wsp_touch()
        k.consts()
        k.m2_gen()
        k.coef_gen()
        k("layer:")
        k.phase_a1()
        k.g_shadow()
        k.wait_cnt(True)
        k.stamp("g_wait")
        late, stat_mfs = k.phase_s1()
        k.phase_z(late, stat_mfs)
        k.z_shadow()
        k.wait_cnt(False)
        k.stamp("z_wait")
        k.phase_k3()
        k.flag()
        k.stamp("h_flag")
        k.halt("k3")
        k.phase_k4()
        k(f"""
        s_cmp_lg_u32 s{sL}, 0
        s_cbranch_scc1 finish
        """)
        k.halt("k4")
        k.x_addr()
        k.flag()
        k(f"""
        s_barrier
        s_cmp_eq_u32 s{sCB}, 7
        s_cbranch_scc1 x_nowd
        """)
        k.wd_dma([0])
        k(f"""
        x_nowd:
        s_mov_b32 s{SX}, s{SXD}
        s_mov_b32 s{SX+1}, s{SXD+1}
        s_mov_b32 s{SXD}, s{sOUT}
        s_mov_b32 s{SXD+1}, s{sOUT+1}
        s_mov_b32 s{sL}, 1
        s_add_u32 s{sZ}, s{sZ}, {ZSTR}
        s_add_u32 s{sH}, s{sH}, {HSTR}
        s_add_u32 s{sST}, s{sST}, 131072
        s_lshl_b32 s{sT+2}, s{sG}, 2
        s_add_u32 s{sT+2}, s{sT+2}, s{sW}
        s_lshl_b32 s{sT+2}, s{sT+2}, 13
        s_add_u32 s{sT+2}, s{sT+2}, s{sWI}
        s_sub_u32 s{sT+2}, s{sT+2}, s{sW1K}
        v_lshlrev_b32 v{vT+8}, 7, v{vL}
        """)
        k.stamp("x_shadow")
        k.wait_flag()
        k.stamp("x_flag")
        k.x_dma()
        k(f"""
        buffer_load_dword v255, v{vT+8}, s[{SWS}:{SWS+3}], s{sT+2} offen sc1
        s_branch layer
        rp_entry:
        """)
        k.repack()
        k("s_branch layer\nfinish:")
        if self.dbg:
            k("s_waitcnt vmcnt(0)")
            k.stamp("end")
            k(f"""
            s_lshl_b32 s{sT}, s2, 2
            s_add_u32 s{sT}, s{sT}, s{sW}
            s_lshl_b32 s{sT}, s{sT}, 8
            s_add_u32 s{sT}, s{sT}, {TS}
            v_lshlrev_b32 v{vT}, 2, v{vL}
            buffer_store_dword v{vTS}, v{vT}, s[{SWS}:{SWS+3}], s{sT} offen
            """)
        k("done:\ns_endpgm\ncodeend:")
        self.L, self.nops = hazard.pad(self.L)
        return self


def generate(path, **kw):
    g = Gen(**kw).build()
    open(path, "w").write(emit([g]))
    return g


if __name__ == "__main__":
    g = generate(sys.argv[1], dbg=len(sys.argv) > 2)
    print("lines", len(g.L), "nop states", g.nops)
```
